```python
import torch

def _softmax(x, axis=-1):
    return torch.softmax(x, dim=axis)
def _gelu(x):
    return torch.nn.functional.gelu(x, approximate="tanh")
def _silu(x):
    return torch.nn.functional.silu(x)
def _sigmoid(x):
    return torch.sigmoid(x)
def _layernorm(x, axis=-1, eps=1e-5):
    m = x.mean(dim=axis, keepdim=True)
    v = x.var(dim=axis, keepdim=True, unbiased=False)
    return (x - m) / torch.sqrt(v + eps)
def _scatter_add(tgt, idx, src, axis=0):
    return tgt.clone().index_add_(axis, idx, src)
def _segment_sum(src, seg, n):
    out = torch.zeros((n,) + src.shape[1:], dtype=src.dtype)
    return out.index_add_(0, seg, src)
def _pad(x, pw):
    flat = tuple(v for pair in reversed(pw) for v in pair)
    return torch.nn.functional.pad(x, flat)

kernel_name = 'sequential_preLN__mha_block__glu_gated_geglu__prompt'

def setup_inputs():

    _w = (lambda a: (lambda t: t.to(torch.bfloat16) if t.is_floating_point() else t)(torch.as_tensor(a)))
    def _A_setup():
        B, S, D, H = 1, 2048, 640, 32
        return {
            "x": _w((lambda *s: torch.randn(*s, dtype=torch.bfloat16) * 0.05)(B, S, D)),
            "wqkv": _w((lambda *s: torch.randn(*s, dtype=torch.bfloat16) * 0.05)(D, 3 * D)),
            "wo": _w((lambda *s: torch.randn(*s, dtype=torch.bfloat16) * 0.05)(D, D)),
        }
    _A_in = _A_setup()

    def _B_setup():
        B, S, Dm, Df = 1, 2048, 640, 1536
        return {
            "x": _w((lambda *s: torch.randn(*s, dtype=torch.bfloat16) * 0.05)(B, S, Dm)),
            "w_gate": _w((lambda *s: torch.randn(*s, dtype=torch.bfloat16) * 0.8)(Dm, Df) * (Dm ** -0.5)),
            "w_up": _w((lambda *s: torch.randn(*s, dtype=torch.bfloat16) * 0.8)(Dm, Df) * (Dm ** -0.5)),
            "w_down": _w((lambda *s: torch.randn(*s, dtype=torch.bfloat16) * 0.8)(Df, Dm) * (Df ** -0.5)),
        }
    _B_in = _B_setup()

    return {
        "A_x": _A_in["x"],
        "A_wqkv": _A_in["wqkv"],
        "A_wo": _A_in["wo"],
        "B_x": _B_in["x"],
        "B_w_gate": _B_in["w_gate"],
        "B_w_up": _B_in["w_up"],
        "B_w_down": _B_in["w_down"],
    }

def reference(A_x, A_wqkv, A_wo, B_x, B_w_gate, B_w_up, B_w_down):
    def _A_ref(x, wqkv, wo):
        B, S, D = x.shape
        H = 32
        Dh = D // H
        qkv = (lambda x, *d: x.permute(*d))((x @ wqkv).reshape(B, S, 3, H, Dh), 2, 0, 3, 1, 4)
        q, k, v = qkv[0], qkv[1], qkv[2]
        scores = torch.einsum("bhqd,bhkd->bhqk", q, k) * (Dh ** -0.5)
        p = _softmax(scores, axis=-1)
        o = torch.einsum("bhqk,bhkd->bhqd", p, v)
        return (lambda x, *d: x.permute(*d))(o, 0, 2, 1, 3).reshape(B, S, D) @ wo

    def _B_ref(x, w_gate, w_up, w_down):
        g = torch.einsum("bsd,df->bsf", x, w_gate)
        u = torch.einsum("bsd,df->bsf", x, w_up)
        h = _gelu(g) * u
        return torch.einsum("bsf,fd->bsd", h, w_down)

    x = A_x
    h = x + _A_ref(_layernorm(x, axis=-1), A_wqkv, A_wo)
    h2 = h + _B_ref(_layernorm(h, axis=-1), B_w_gate, B_w_up, B_w_down)
    return h2
```

```python
import re


class Asm:
    def __init__(self):
        self.lines = []

    def __call__(self, text):
        for l in text.split("\n"):
            l = l.strip()
            if not l:
                continue
            if l.endswith(":") or l.startswith("."):
                self.lines.append(l)
            else:
                self.lines.append("    " + l)

    def label(self, name):
        self.lines.append(name + ":")

    def text(self):
        return "\n".join(self.lines) + "\n"


def vr(base, n=1):
    return f"v{base}" if n == 1 else f"v[{base}:{base + n - 1}]"


def ar(base, n=1):
    return f"a{base}" if n == 1 else f"a[{base}:{base + n - 1}]"


def sr(base, n=1):
    return f"s{base}" if n == 1 else f"s[{base}:{base + n - 1}]"


def kernel_descriptor(name, nvgpr, accum_offset=None, nsgpr=102):
    if accum_offset is None:
        accum_offset = min(256, (nvgpr + 3) // 4 * 4)
    return f""".amdhsa_kernel {name}
  .amdhsa_next_free_vgpr {nvgpr}
  .amdhsa_next_free_sgpr {nsgpr}
  .amdhsa_accum_offset {accum_offset}
  .amdhsa_group_segment_fixed_size 0
  .amdhsa_kernarg_size 80
  .amdhsa_user_sgpr_count 2
  .amdhsa_user_sgpr_kernarg_segment_ptr 1
  .amdhsa_system_sgpr_workgroup_id_x 1
.end_amdhsa_kernel
"""


_REG = re.compile(r"^(-|abs\(|\|)?([vas])(\d+|\[(\d+):(\d+)\])\)?\|?$")
TRANS = ("v_exp_", "v_log_", "v_rcp_", "v_rsq_", "v_sqrt_", "v_sin_", "v_cos_")


def _regs(op):
    op = op.strip()
    if op in ("vcc", "vcc_lo", "vcc_hi"):
        return {("s", "vcc")}
    if op in ("exec", "exec_lo", "exec_hi"):
        return {("s", "exec")}
    if op == "m0":
        return {("s", "m0")}
    m = _REG.match(op)
    if not m:
        return set()
    k = m.group(2)
    if m.group(4) is not None:
        return {(k, i) for i in range(int(m.group(4)), int(m.group(5)) + 1)}
    return {(k, int(m.group(3)))}


class Ins:
    def __init__(self, text, idx):
        self.text = text.strip()
        self.idx = idx
        t = self.text.split(";")[0].strip()
        parts = t.split(None, 1)
        self.op = parts[0]
        rest = parts[1] if len(parts) > 1 else ""
        ops = [o.strip() for o in rest.split(",")] if rest else []
        if ops:
            last = ops[-1].split()
            self.mods = last[1:]
            ops[-1] = last[0] if last else ""
        else:
            self.mods = []
        self.ops = ops
        op = self.op
        self.is_mfma = op.startswith("v_mfma") or op.startswith("v_smfmac")
        self.is_valu = op.startswith("v_") and not self.is_mfma
        self.is_trans = op.startswith(TRANS)
        self.is_ds = op.startswith("ds_")
        self.is_vmem = op.startswith(("buffer_", "global_", "flat_"))
        self.is_salu = op.startswith("s_")
        self.lds_dma = self.is_vmem and ("lds" in self.mods or "_lds_" in op)
        R = [_regs(o) for o in ops]
        self.w, self.r = set(), set()
        self.srcC = set()
        self.srcAB = set()
        self.store_data = set()
        if self.is_mfma:
            self.w = R[0]
            self.srcAB = R[1] | R[2]
            if op.startswith("v_smfmac"):
                self.srcC = R[0]
                self.srcAB |= R[3]
            else:
                self.srcC = R[3]
            self.r = self.srcAB | self.srcC
            if "4x4x4" in op:
                self.passes = 2
            elif "16x16" in op:
                self.passes = 4
            else:
                self.passes = 8
        elif self.is_valu:
            if op.startswith("v_cmpx"):
                self.w = R[0] | {("s", "exec")}
                for x in R[1:]:
                    self.r |= x
            elif op.startswith(("v_permlane16_swap", "v_permlane32_swap", "v_swap")):
                self.w = R[0] | R[1]
                self.r = R[0] | R[1]
            elif op.startswith(("v_add_co", "v_sub_co", "v_addc_co", "v_subb_co", "v_subrev_co", "v_mad_u64", "v_div_scale")):
                self.w = R[0] | R[1]
                for x in R[2:]:
                    self.r |= x
            elif op == "v_nop":
                pass
            else:
                self.w = R[0]
                for x in R[1:]:
                    self.r |= x
                if op.startswith(("v_fmac", "v_dot2c", "v_writelane", "v_pk_fmac")) or "UNUSED_PRESERVE" in t or "dpp" in op or any(m.startswith(("row_", "quad_perm", "wave_")) for m in self.mods):
                    self.r |= R[0]
                if op.startswith("v_cndmask") and len(ops) == 3:
                    self.r |= {("s", "vcc")}
        elif self.is_ds:
            if op.startswith(("ds_read", "ds_bpermute", "ds_permute", "ds_swizzle")) or "_rtn" in op:
                self.w = R[0]
                for x in R[1:]:
                    self.r |= x
            else:
                for x in R:
                    self.r |= x
        elif self.is_vmem:
            if self.lds_dma or op in ("buffer_wbl2", "buffer_inv"):
                for x in R:
                    self.r |= x
                if self.lds_dma:
                    self.r |= {("s", "m0")}
            elif "load" in op:
                self.w = R[0]
                for x in R[1:]:
                    self.r |= x
            elif "atomic" in op:
                for x in R:
                    self.r |= x
                if "sc0" in self.mods:
                    self.w = R[0]
            else:
                for x in R:
                    self.r |= x
                if "x4" in op or "x3" in op:
                    self.store_data = R[0] if op.startswith("buffer_") else R[1]
        elif self.is_salu:
            if op.startswith(("s_cmp", "s_waitcnt", "s_barrier", "s_nop", "s_branch", "s_cbranch", "s_endpgm", "s_setprio", "s_sleep", "s_bitcmp")):
                for x in R:
                    self.r |= x
            else:
                if R:
                    self.w = R[0]
                for x in R[1:]:
                    self.r |= x
                if "saveexec" in op:
                    self.w |= {("s", "exec")}
        self.states = 1
        if op == "s_nop":
            self.states = int(ops[0], 0) + 1
        self.is_dpp = self.is_valu and ("dpp" in op or any(m.startswith(("row_", "quad_perm", "wave_")) for m in self.mods))


def _sg(s):
    return {x for x in s if x[0] == "s"}


def _vg(s):
    return {x for x in s if x[0] in "va"}


def required(p, c):
    n = 0
    why = ""

    def need(k, w):
        nonlocal n, why
        if k > n:
            n, why = k, w

    if p.is_valu:
        wv, ws = _vg(p.w), _sg(p.w)
        if c.is_mfma and wv & c.r:
            need(2, "VALU->MFMA operand")
        if p.is_trans and c.is_valu and wv & c.r:
            need(1, "trans->VALU")
        if p.is_trans and (c.is_ds or c.is_vmem) and wv & c.r:
            need(1, "trans->mem (conservative)")
        if c.op.startswith("v_permlane") and wv & c.r:
            need(2, "VALU->permlane")
        if c.is_dpp and wv & c.r:
            need(2, "VALU->DPP")
        if c.op.startswith(("v_readlane", "v_readfirstlane")) and wv & c.r:
            need(1, "VALU->readlane")
        if c.is_vmem and ws & c.r:
            need(5, "VALU sgpr->VMEM")
        if c.is_valu and (ws - {("s", "exec")}) & c.r:
            need(2, "VALU sgpr->VALU")
        if c.is_salu and (ws - {("s", "exec")}) & c.r:
            need(1, "VALU sgpr->SALU (conservative)")
        if ("s", "exec") in ws:
            if c.is_mfma or c.op.startswith(("v_permlane", "v_readlane", "v_readfirstlane", "v_writelane")):
                need(4, "cmpx->mfma/lane op")
            if c.is_dpp:
                need(5, "exec->dpp")
        if ("sdwa" in p.op or any(m.startswith("op_sel:") for m in p.mods)) and c.is_valu and wv & (c.r | c.w):
            need(1, "sdwa/opsel->VALU")
    if p.is_mfma:
        t = {2: 0, 4: 1, 8: 2}[p.passes]
        D = p.w
        if c.is_mfma:
            if D & c.srcAB:
                need((5, 8, 12)[t], "MFMA D->MFMA A/B")
            if D & c.srcC:
                if D == c.srcC and p.passes == c.passes:
                    need((2, 0, 0)[t], "MFMA D->same C")
                else:
                    need((4, 6, 10)[t], "MFMA D->overlapping C")
            elif D & c.w:
                need((4, 6, 10)[t], "MFMA D->MFMA D WAW (conservative)")
        elif (c.is_valu or c.is_ds or c.is_vmem) and D & (c.r | c.w):
            need((5, 8, 12)[t], "MFMA D->VALU/mem")
        if c.is_valu and p.srcC & c.w:
            need((1, 3, 7)[t], "MFMA C WAR")
    if p.store_data and c.w & p.store_data:
        need(2, "store data WAR")
    if p.is_salu and ("s", "m0") in p.w and c.lds_dma:
        need(1, "m0->lds dma")
    return n, why


def check_sequence(seq, name=""):
    bad = []
    for j, c in enumerate(seq):
        dist = 0
        for i in range(j - 1, max(-1, j - 24), -1):
            p = seq[i]
            n, why = required(p, c)
            if n > dist:
                bad.append(f"{name}: need {n} got {dist} ({why}): [{p.idx}] {p.text}  ->  [{c.idx}] {c.text}")
            dist += p.states
            if dist >= 20:
                break
    return bad


def check_text(text):
    ins, labels = [], {}
    for n, l in enumerate(text.split("\n"), 1):
        s = l.split(";")[0].strip()
        if not s or s.startswith("."):
            continue
        if s.endswith(":"):
            labels[s[:-1]] = len(ins)
            continue
        ins.append(Ins(s, n))
    bad = []
    seg = []
    for x in ins:
        seg.append(x)
        if x.op in ("s_branch", "s_endpgm"):
            bad += check_sequence(seg, "lin")
            seg = []
    bad += check_sequence(seg, "lin")
    for k, x in enumerate(ins):
        if x.op.startswith(("s_branch", "s_cbranch")):
            t = labels.get(x.ops[0])
            if t is None:
                continue
            pre = []
            for y in reversed(ins[max(0, k - 24):k + 1]):
                if pre and y.op in ("s_branch", "s_endpgm"):
                    break
                pre.insert(0, y)
            post = []
            for y in ins[t:t + 24]:
                post.append(y)
                if y.op in ("s_branch", "s_endpgm"):
                    break
            for b in check_sequence(pre + post, f"edge {x.ops[0]}"):
                if b not in bad:
                    bad.append(b)
    return sorted(set(bad))
```

```python
from asmlib import *
from layout import *

HEADER = open("sequential_preLN__mha_block__glu_gated_geglu__prompt.s.ref").read().split("; Override")[0]

def assemble_file(gens):
    a = Asm()
    infos = [g(a) for g in gens]
    body = a.text()
    bad = check_text(body)
    for b in bad: print("HAZARD", b)
    assert not bad, "hazards found"
    out = HEADER
    for i in infos:
        out += f"; @launch kernel={i['name']} grid=({i['grid']},1,1) block=({i['block']},1,1) lds={i['lds']}\n"
    out += '.amdgcn_target "amdgcn-amd-amdhsa--gfx950"\n.text\n'
    seen = []
    for i in infos:
        if i['name'] not in seen:
            out += f".globl {i['name']}\n"; seen.append(i['name'])
    out += body
    out += '.section .rodata,"a"\n'
    seen = []
    for i in infos:
        if i['name'] in seen: continue
        seen.append(i['name'])
        out += ".p2align 6\n" + kernel_descriptor(i['name'], i['nvgpr'], i.get('accum'))
    return out, infos
```

```python
from asmlib import *
from layout import *

SC = KV_CHUNK
ONES_BYTES = 10240

def srd(a, d, base, size, off=None):
    if off is None:
        a(f"s_mov_b32 s{d}, s{base}")
        a(f"s_and_b32 s{d+1}, s{base+1}, 0xffff")
    else:
        a(f"s_add_u32 s{d}, s{base}, {off}")
        a(f"s_addc_u32 s{d+1}, s{base+1}, 0")
        a(f"s_and_b32 s{d+1}, s{d+1}, 0xffff")
    a(f"s_mov_b32 s{d+2}, {size}")
    a(f"s_mov_b32 s{d+3}, 0x20000")

def gen_attn(a, name="attn_kernel", NS=4, stamp=False, order=3, prio=0, allbar=False, only=None, abl=()):
    O, NEGM, SB_ = 16, 32, (48, 64, 112, 128)
    Q1, Q2 = 80, (84, 86)
    K1, K2 = 88, 92
    V = ((96, 100), (104, 108))
    vL16, vK1, vK2, vV, vVoff, vIDX, vT, vMask, vL8 = 1, 2, 3, 4, 5, 6, 7, 8, 9
    sW, sHead, sI, sSlot, sKV, sTmp, sQ, sSrc, sRd = 20, 21, 22, 23, 25, 27, 28, 29, 35
    sIdx = (30, 31, 32)
    WS = 8
    I1 = 9 - NS
    ONES = NS * SC
    L = lambda s: f"{name}_{s}"

    def qk1(dst, c): a(f"v_mfma_f32_32x32x16_bf16 {vr(dst,16)}, {vr(K1,4)}, {vr(Q1,4)}, {c}")
    def qk2(dst, par): a(f"v_mfma_f32_32x32x8bf16_1k {vr(dst,16)}, {vr(K2,2)}, {vr(Q2[par],2)}, {vr(dst,16)}")
    def pv(vf, p): a(f"v_smfmac_f32_32x32x32_bf16 {vr(O,16)}, {vr(vf,4)}, {vr(p,8)}, v{vIDX}")
    def rdK1(n):
      if 'noK' not in abl: a(f"ds_read_b128 {vr(K1,4)}, v{vK1} offset:{n * 1024}")
    def rdK2(n):
      if 'noK' not in abl: a(f"ds_read_b64 {vr(K2,2)}, v{vK2} offset:{KV_K2 + n * 256}")
    def rdV(n, g):
      if 'noV' not in abl: a(f"ds_read_b128 {vr(V[n % 2][g], 4)}, v{vV} offset:{(n * 2 + g) * 640}")

    def dma(src, slot):
        for j in range(3):
            a(f"s_add_u32 m0, s{slot}, s{sIdx[j]}")
            a(f"s_add_u32 s{sTmp}, s{src}, s{sIdx[j]}")
            a(f"buffer_load_dwordx4 v{vL16}, s[{WS}:{WS+3}], s{sTmp} offen lds")

    a(f".p2align 8\n.type {name},@function\n{name}:")
    a(f"s_cmp_ge_u32 s2, 256\ns_cbranch_scc1 {L('exit')}")
    if only is not None:
        a(f"s_cmp_lg_u32 s2, {only}\ns_cbranch_scc1 {L('exit')}")
    a(f"s_load_dwordx2 s[4:5], s[0:1], {ARG_WS}")
    if stamp:
        a(f"s_load_dwordx2 s[6:7], s[0:1], {ARG_DBG}\ns_memtime s[40:41]\ns_memrealtime s[54:55]")
    a(f"v_lshrrev_b32 v{vT}, 6, v0")
    a(f"v_lshlrev_b32 v15, 4, v0")
    a(f"v_and_b32 v0, 63, v0")
    a(f"v_readfirstlane_b32 s{sW}, v{vT}")
    a(f"v_lshlrev_b32 v{vL16}, 4, v0")
    a(f"s_and_b32 s{sHead}, s2, 7\ns_lshl_b32 s{sHead}, s{sHead}, 2\ns_bfe_u32 s{sTmp}, s2, 0x20003\ns_add_u32 s{sHead}, s{sHead}, s{sTmp}")
    a(f"s_mul_i32 s{sKV}, s{sHead}, {KV_HEAD}\ns_add_u32 s{sKV}, s{sKV}, {WS_KV}")
    a(f"s_lshl_b32 s{sIdx[0]}, s{sW}, 10\ns_add_u32 s{sIdx[1]}, s{sIdx[0]}, 0x2000\ns_add_u32 s{sIdx[2]}, s{sIdx[0]}, 0x4000\ns_min_u32 s{sIdx[2]}, s{sIdx[2]}, {19*1024}")
    a(f"s_lshr_b32 s{sQ}, s2, 5\ns_lshl_b32 s{sQ}, s{sQ}, 3\ns_add_u32 s{sQ}, s{sQ}, s{sW}")
    a(f"s_mul_i32 s33, s{sHead}, {Q_HEAD}\ns_mul_i32 s34, s{sQ}, 1280\ns_add_u32 s33, s33, s34")
    a(f"v_and_b32 v{vT}, 31, v0\nv_lshlrev_b32 v{vL8}, 3, v{vT}")
    a("s_waitcnt lgkmcnt(0)")
    srd(a, WS, 4, WS_END)
    a(f"s_mov_b32 s{sSrc}, s{sKV}\ns_mov_b32 s{sSlot}, 0")
    dma(sSrc, sSlot)
    a(f"buffer_load_dwordx4 {vr(Q1,4)}, v{vL16}, s[{WS}:{WS+3}], s33 offen")
    a(f"buffer_load_dwordx2 {vr(Q2[0],2)}, v{vL8}, s[{WS}:{WS+3}], s33 offen offset:1024")
    for j in range(1, NS - 1):
        a(f"s_add_u32 s{sSrc}, s{sSrc}, {SC}\ns_add_u32 s{sSlot}, s{sSlot}, {SC}")
        dma(sSrc, sSlot)
    a(f"s_add_u32 s{sSrc}, s{sSrc}, {SC}\ns_add_u32 s{sSlot}, s{sSlot}, {SC}")
    for r in range(4): a(f"v_mov_b32 v{16+r}, 0x3f803f80")
    a(f"v_add_u32 v15, {ONES}, v15\nv_min_u32 v14, {ONES + ONES_BYTES - 8192 - 16}, v15")
    a(f"ds_write_b128 v15, v[16:19]\nds_write_b128 v14, v[16:19] offset:8192")
    a(f"v_mov_b32 v{vK1}, v{vL16}")
    a(f"v_lshlrev_b32 v{vK2}, 3, v0")
    a(f"v_lshrrev_b32 v11, 5, v0")
    a(f"v_bfe_u32 v12, v0, 2, 1\nv_bfe_u32 v13, v0, 3, 1")
    a(f"v_and_b32 v10, 0x13, v0\nv_lshl_or_b32 v10, v12, 3, v10\nv_lshl_or_b32 v10, v13, 2, v10")
    a(f"v_xor_b32 v12, v11, v12")
    a(f"v_lshlrev_b32 v10, 5, v10\nv_lshl_add_u32 v10, v12, 4, v10\nv_add_u32 v10, {KV_V}, v10")
    a(f"v_cmp_le_u32 vcc, 28, v{vT}\nv_xor_b32 v11, 1, v11\nv_lshlrev_b32 v11, 4, v11")
    a(f"v_cndmask_b32 v12, 0, 1, vcc\nv_lshl_add_u32 v11, v12, 7, v11\nv_add_u32 v11, {ONES}, v11")
    a(f"v_cmp_gt_u32 vcc, 20, v{vT}\nv_mov_b32 v{vIDX}, 0xdddddddd\ns_nop 0")
    a(f"v_cndmask_b32 v{vVoff}, v11, v10, vcc\nv_cndmask_b32 v{vMask}, 0, 1, vcc\nv_mov_b32 v{vV}, v{vVoff}")
    for r in range(16):
        a(f"v_mov_b32 v{O+r}, 0")
    for r in range(8, 16):
        a(f"v_mov_b32 v{SB_[3]+r}, 0")
    a(f"v_cmp_gt_u32 vcc, 32, v0")
    for r in range(4):
        a(f"v_mov_b32 v{V[1][1]+r}, 0")
    a(f"s_waitcnt vmcnt({3*(NS-2)}) lgkmcnt(0)")
    a(f"v_cndmask_b32 v{Q2[1]}, v{Q2[0]}, 0, vcc\nv_cndmask_b32 v{Q2[1]+1}, v{Q2[0]+1}, 0, vcc")
    a(f"v_cndmask_b32 v{Q2[0]}, 0, v{Q2[0]}, vcc\nv_cndmask_b32 v{Q2[0]+1}, 0, v{Q2[0]+1}, vcc")
    a("s_barrier")
    rdK1(0); rdK2(0); rdV(0, 0); rdV(0, 1)
    a("s_waitcnt lgkmcnt(2)")
    A_ = SB_[0]
    qk1(A_, "0"); qk2(A_, 0)
    a("s_nop 11")
    a(f"v_max3_f32 v10, v{A_}, v{A_+1}, v{A_+2}")
    for r in range(3, 15, 2):
        a(f"v_max3_f32 v10, v10, v{A_+r}, v{A_+r+1}")
    a(f"v_max_f32 v10, v10, v{A_+15}\nv_mov_b32 v11, v10\ns_nop 1\nv_permlane32_swap_b32 v10, v11")
    a(f"v_max_f32 v10, v10, v11")
    for r in range(16):
        a(f"v_sub_f32 v{NEGM+r}, 0, v10")
    a("s_nop 1")
    qk1(A_, vr(NEGM, 16))
    rdK1(1)
    qk2(A_, 0)
    a("s_waitcnt lgkmcnt(0)")
    qk1(SB_[1], vr(NEGM, 16))
    rdK1(2)
    qk2(SB_[1], 1)
    rdK2(2)
    a(f"s_mov_b32 s{sI}, 0\ns_mov_b32 s{sRd}, 0")
    if prio:
        a(f"s_cmp_ge_u32 s{sW}, 4\ns_cbranch_scc0 {L('noprio')}\ns_setprio 1")
        a.label(L("noprio"))
    if 'linV' in abl: a(f"v_mov_b32 v{vVoff}, v{vL16}\nv_mov_b32 v{vV}, v{vL16}")
    if stamp: a("s_memtime s[42:43]")
    a("s_nop 8")
    a(".p2align 6" if 'al64' in abl else ".p2align 3")
    if 'shift4' in abl: a("s_nop 0")
    a.label(L("loop"))
    for n in range(8):
        A_, B_, P_ = SB_[n % 4], SB_[(n + 2) % 4], SB_[(n + 3) % 4]
        e = lambda *rs: [a(f"v_exp_f32 v{A_+r}, v{A_+r}") for r in rs]
        nv, nk = (n + 1) % 8, (n + 3) % 8
        def sync():
            if 'nosync' in abl: return
            a(f"s_cmp_ge_u32 s{sI}, {I1}\ns_cbranch_scc1 {L('lastbar')}")
            a(f"s_waitcnt vmcnt({3*(NS-3)})\ns_barrier")
            dma(sSrc, sSlot)
            a(f"s_add_u32 s{sSrc}, s{sSrc}, {SC}\ns_add_u32 s{sSlot}, s{sSlot}, {SC}")
            a(f"s_cmp_eq_u32 s{sSlot}, {NS*SC}\ns_cselect_b32 s{sSlot}, 0, s{sSlot}")
            a(f"s_branch {L('nobar')}")
            a.label(L("lastbar"))
            if not allbar:
                a(f"s_cmp_gt_u32 s{sI}, {I1}\ns_cbranch_scc1 {L('nobar')}")
            a("s_waitcnt vmcnt(0)\ns_barrier")
            a.label(L("nobar"))
            a(f"s_add_u32 s{sRd}, s{sRd}, {SC}\ns_cmp_eq_u32 s{sRd}, {NS*SC}\ns_cselect_b32 s{sRd}, 0, s{sRd}")
            a(f"v_add_u32 v{vK1}, s{sRd}, v{vL16}\nv_lshl_add_u32 v{vK2}, v0, 3, s{sRd}")
        advV = lambda: a(f"v_mad_u32_u24 v{vV}, v{vMask}, s{sRd}, v{vVoff}")
        if order == 3:
            e(0, 1)
            a("s_waitcnt lgkmcnt(0)")
            pv(V[(n + 1) % 2][1], P_ + 8)
            if n == 7: advV()
            rdV(nv, 0)
            e(2, 3, 4, 5)
            qk1(B_, vr(NEGM, 16))
            if n == 5: sync()
            rdK1(nk)
            e(6, 7, 8, 9)
            qk2(B_, n % 2)
            rdV(nv, 1)
            if n % 2 == 1: rdK2(nk)
            e(10, 11, 12, 13)
            pv(V[n % 2][0], A_)
            e(14, 15)
        elif order == 4:
            e(0, 1)
            pv(V[(n + 1) % 2][1], P_ + 8)
            e(2, 3, 4, 5)
            a("s_waitcnt lgkmcnt(0)")
            qk1(B_, vr(NEGM, 16))
            e(6, 7, 8, 9)
            qk2(B_, n % 2)
            if n == 5: sync()
            if n == 7: advV()
            rdK1(nk); rdV(nv, 0); rdV(nv, 1)
            if n % 2 == 1: rdK2(nk)
            e(10, 11, 12, 13)
            pv(V[n % 2][0], A_)
            e(14, 15)
        elif order == 5:
            e(0, 1)
            pv(V[(n + 1) % 2][1], P_ + 8)
            if n == 7: advV()
            rdV(nv, 1)
            e(2, 3, 4, 5)
            a("s_waitcnt lgkmcnt(1)")
            qk1(B_, vr(NEGM, 16))
            if n == 5: sync()
            rdK1(nk)
            e(6, 7, 8, 9)
            qk2(B_, n % 2)
            if n % 2 == 1: rdK2(nk)
            e(10, 11, 12, 13)
            pv(V[n % 2][0], A_)
            rdV(nv, 0)
            e(14, 15)
    a(f"s_add_u32 s{sI}, s{sI}, 1\ns_cmp_lt_u32 s{sI}, 8\ns_cbranch_scc1 {L('loop')}")
    pv(V[1][1], SB_[3] + 8)
    if stamp: a("s_memtime s[44:45]")
    a(f"s_mul_i32 s33, s{sQ}, {O_TILE}\ns_mul_i32 s34, s{sHead}, 1280\ns_add_u32 s33, s33, s34\ns_add_u32 s33, s33, {WS_O}")
    a("s_mov_b32 s36, 0x53800000")
    a("s_nop 6")
    a(f"v_mul_f32 v10, 0, v{O}")
    for r in range(1, 12):
        a(f"v_fma_f32 v10, v{O+r}, 0, v10")
    a(f"v_add_f32 v10, v10, v{O+12}")
    a(f"v_cmp_nge_f32 vcc, s36, v10\ns_nop 1\ns_cbranch_vccnz {L('slow')}")
    a.label(L("finish"))
    a(f"v_rcp_f32 v10, v{O+12}\ns_nop 0")
    for r in range(12):
        a(f"v_mul_f32 v{O+r}, v{O+r}, v10")
    for r in range(6):
        a(f"v_cvt_pk_bf16_f32 v{O+r}, v{O+2*r}, v{O+2*r+1}")
    a(f"buffer_store_dwordx4 {vr(O,4)}, v{vL16}, s[{WS}:{WS+3}], s33 offen")
    a("s_mov_b64 exec, 0xffffffff")
    a(f"buffer_store_dwordx2 {vr(O+4,2)}, v{vL8}, s[{WS}:{WS+3}], s33 offen offset:1024")
    if stamp:
        a(f"s_waitcnt vmcnt(0)\ns_memtime s[46:47]\ns_memrealtime s[56:57]\ns_waitcnt lgkmcnt(0)\ns_sub_u32 s56, s56, s54")
        a(f"s_cmp_lg_u32 s2, 77\ns_cbranch_scc1 {L('exit')}")
        a(f"s_sub_u32 s42, s42, s40\ns_sub_u32 s44, s44, s40\ns_sub_u32 s46, s46, s40")
        a(f"v_mov_b32 v12, s42\nv_mov_b32 v13, s44\nv_mov_b32 v14, s46\nv_mov_b32 v15, s56\ns_lshl_b32 s3, s{sW}, 4\nv_mov_b32 v10, s3")
        a("s_mov_b64 exec, 1\nglobal_store_dwordx4 v10, v[12:15], s[6:7]")
    a.label(L("exit"))
    a("s_endpgm")

    a.label(L("slow"))
    A_ = SB_[0]
    a(f"v_cmp_ne_u32 s[52:53], 0, v{vMask}\nv_mov_b32 v15, 0xff7fffff\nv_mov_b32 v14, 0x3f803f80")
    a(f"v_cndmask_b32 v{vV}, 0, v{vVoff}, s[52:53]")
    a("s_mov_b32 s37, 0")
    a.label(L("slow_pass"))
    a(f"s_mov_b32 s{sI}, 0")
    a.label(L("slow_tile"))
    a(f"s_lshr_b32 s38, s{sI}, 3\ns_mul_i32 s38, s38, {KV_CHUNK}\ns_add_u32 s38, s38, s{sKV}\ns_and_b32 s39, s{sI}, 7")
    a(f"s_lshl_b32 s48, s39, 10\ns_add_u32 s48, s48, s38")
    a(f"s_lshl_b32 s49, s39, 8\ns_add_u32 s49, s49, s38\ns_add_u32 s49, s49, {KV_K2}")
    a(f"s_mul_i32 s50, s39, 1280\ns_add_u32 s50, s50, s38")
    a(f"buffer_load_dwordx4 {vr(K1,4)}, v{vL16}, s[{WS}:{WS+3}], s48 offen")
    a(f"buffer_load_dwordx2 {vr(K2,2)}, v{vL8}, s[{WS}:{WS+3}], s49 offen")
    a(f"s_cmp_eq_u32 s37, 0\ns_cbranch_scc0 {L('slow_pv')}")
    a("s_waitcnt vmcnt(0)")
    qk1(A_, "0"); qk2(A_, 0)
    a("s_nop 11")
    for r in range(0, 16, 2):
        a(f"v_max3_f32 v15, v15, v{A_+r}, v{A_+r+1}")
    a(f"s_branch {L('slow_next')}")
    a.label(L("slow_pv"))
    for g in range(2):
        a(f"buffer_load_dwordx4 {vr(V[0][g],4)}, v{vV}, s[{WS}:{WS+3}], s50 offen offset:{g*640}")
    a("s_waitcnt vmcnt(0)")
    qk1(A_, vr(NEGM, 16)); qk2(A_, 0)
    for g in range(2):
        for r in range(4):
            a(f"v_cndmask_b32 v{V[0][g]+r}, v14, v{V[0][g]+r}, s[52:53]")
    a("s_nop 3")
    for r in range(16):
        a(f"v_exp_f32 v{A_+r}, v{A_+r}")
    a("s_nop 1")
    pv(V[0][0], A_); pv(V[0][1], A_ + 8)
    a("s_nop 3")
    a.label(L("slow_next"))
    a(f"s_add_u32 s{sI}, s{sI}, 1\ns_cmp_lt_u32 s{sI}, 64\ns_cbranch_scc1 {L('slow_tile')}")
    a(f"s_cmp_eq_u32 s37, 0\ns_cbranch_scc0 {L('slow_done')}")
    a(f"v_mov_b32 v11, v15\ns_nop 1\nv_permlane32_swap_b32 v15, v11\nv_max_f32 v15, v15, v11")
    for r in range(16):
        a(f"v_sub_f32 v{NEGM+r}, 0, v15\nv_mov_b32 v{O+r}, 0")
    a(f"s_mov_b32 s37, 1\ns_branch {L('slow_pass')}")
    a.label(L("slow_done"))
    a(f"s_nop 11\ns_branch {L('finish')}")
    return dict(name=name, grid=256, block=512, lds=NS * SC + ONES_BYTES, nvgpr=144)
```

```python
from asmlib import *
from layout import *
from k_attn import srd
from k_qkv import f2u, stamp_begin, stamp_at, stamp_end
import math

def gen_gate(a, name="gate_kernel", NS=3, stamp=False, st_flags="", stamp_wg=77, first=2, abl=()):
    SLOT = 40960
    SCR = NS * SLOT
    ACC = 64
    acc = lambda j, i: ACC + (j * 2 + i) * 16
    FX = lambda p, i: 24 + p * 20 + i * 4
    FW = lambda p, j: 24 + p * 20 + 8 + j * 4
    WC, ONE = 160, 172
    vXA = lambda e: 8 + e
    vWA = lambda j, e: 10 + 2 * j + e
    sG, sU, sWS = 8, 12, 16
    sW, sRb, sCb, sMw, sNw, sC, sT, sRd, sDelta, sM0, sSw, sSt = range(20, 32)
    L = lambda s: f"{name}_{s}"

    a(f".p2align 8\n.type {name},@function\n{name}:")
    a(f"s_cmp_ge_u32 s2, 256\ns_cbranch_scc1 {L('exit')}")
    a(f"s_load_dwordx4 s[4:7], s[0:1], {ARG_WG}\ns_load_dwordx2 s[36:37], s[0:1], {ARG_WS}")
    stamp_begin(a, stamp)
    a(f"v_lshrrev_b32 v1, 6, v0\nv_and_b32 v0, 63, v0\nv_readfirstlane_b32 s{sW}, v1")
    a(f"s_bfe_u32 s{sRb}, s2, 0x20001\ns_lshl_b32 s{sRb}, s{sRb}, 2\ns_bfe_u32 s{sT}, s2, 0x20003\ns_add_u32 s{sRb}, s{sRb}, s{sT}")
    a(f"s_and_b32 s{sCb}, s2, 1\ns_lshl_b32 s{sCb}, s{sCb}, 3\ns_lshr_b32 s{sT}, s2, 5\ns_add_u32 s{sCb}, s{sCb}, s{sT}")
    a(f"s_cmp_lt_u32 s{sW}, 4\ns_cbranch_scc1 {L('compute')}")
    a(f"s_and_b32 s{sW}, s{sW}, 3\ns_mov_b32 s32, 5462")
    for i in range(3):
        a(f"v_add_u32 v2, {64*i}, v0\nv_mul_u32_u24 v3, s32, v2\nv_lshrrev_b32 v3, 16, v3\nv_mul_u32_u24 v4, 12, v3\nv_sub_u32 v4, v2, v4")
        a(f"v_mul_u32_u24 v3, 3072, v3\nv_lshl_add_u32 v{8+i}, v4, 4, v3\nv_xor_b32 v4, 2, v4\nv_lshl_add_u32 v{11+i}, v4, 4, v3")
    a(f"v_lshlrev_b32 v14, 4, v0")
    a(f"s_mul_i32 s{sSw}, s{sW}, {16*3072}\ns_mul_i32 s{sT}, s{sCb}, 192\ns_add_u32 s{sSw}, s{sSw}, s{sT}")
    a(f"s_lshl_b32 s{sSt}, s{sRb}, 2\ns_add_u32 s{sSt}, s{sSt}, s{sW}\ns_mul_i32 s{sSt}, s{sSt}, {H_TILE}\ns_add_u32 s{sSt}, s{sSt}, {WS_H}")
    a(f"s_lshl_b32 s{sM0}, s{sW}, 12\ns_mul_i32 s33, s{sW}, 3072\ns_add_u32 s33, s33, 16384")
    a("s_waitcnt lgkmcnt(0)")
    srd(a, sG, 4, D * DF * 2); srd(a, sU, 6, D * DF * 2); srd(a, sWS, 36, WS_END)
    issued = 0
    def issue():
        nonlocal issued
        base = (issued % NS) * SLOT
        a(f"s_add_u32 m0, s{sM0}, {base}\ns_nop 0")
        for k in range(4):
            a(f"buffer_load_dwordx4 v14, s[{sWS}:{sWS+3}], s{sSt} offen offset:{k*1024} lds")
        for m, sd in enumerate((sG, sU)):
            for i in range(3):
                a(f"s_add_u32 m0, s33, {base + m*12288 + i*1024}\ns_nop 0")
                a(f"buffer_load_dwordx4 v{8+3*m+i}, s[{sd}:{sd+3}], s{sSw} offen lds")
        a(f"s_add_u32 s{sSw}, s{sSw}, {64*3072}\ns_add_u32 s{sSt}, s{sSt}, 4096")
        issued += 1
    for b in range(10):
        while issued < min(10, b + first if b == 0 else b - 1 + NS):
            issue()
        a(f"s_waitcnt vmcnt({10*(issued-1-b)})\ns_barrier")
    a("s_barrier\ns_barrier\ns_endpgm")

    a.label(L("compute"))
    a(f"s_lshr_b32 s{sMw}, s{sW}, 1\ns_and_b32 s{sNw}, s{sW}, 1")
    a(f"v_and_b32 v2, 31, v0\nv_lshrrev_b32 v3, 5, v0")
    a(f"v_lshlrev_b32 v4, 3, v2\ns_mov_b32 s32, {4*ST_BLK}\nv_mad_u32_u24 v4, v3, s32, v4")
    a(f"s_lshl_b32 s33, s{sRb}, 10\ns_lshl_b32 s{sT}, s{sMw}, 9\ns_add_u32 s33, s33, s{sT}\ns_add_u32 s33, s33, {WS_ST}")
    a("s_waitcnt lgkmcnt(0)")
    srd(a, sWS, 36, WS_END)
    PT = 176
    for k in range(4):
        for i in range(2):
            a(f"buffer_load_dwordx2 {vr(PT+(i*4+k)*2,2)}, v4, s[{sWS}:{sWS+3}], s33 offen offset:{i*256}")
        a(f"s_add_u32 s33, s33, {ST_BLK}")
    a(f"v_mov_b32 v5, 0\ns_lshl_b32 s{sT}, s{sW}, 8\ns_add_u32 s{sT}, s{sT}, {SCR}\nv_lshl_add_u32 v6, v0, 2, s{sT}\nds_write_b32 v6, v5")
    a(f"s_lshl_b32 s{sT}, s{sMw}, 13\ns_lshl_b32 s32, s{sMw}, 10\ns_add_u32 s34, s{sT}, s32\nv_lshl_add_u32 v{vXA(0)}, v0, 4, s34")
    a(f"s_xor_b32 s34, s34, 1024\nv_lshl_add_u32 v{vXA(1)}, v0, 4, s34")
    a(f"v_bfe_u32 v4, v0, 2, 2\nv_lshl_add_u32 v5, v3, 3, v4\nv_mul_u32_u24 v5, 192, v5")
    a(f"v_bfe_u32 v6, v0, 4, 1\nv_mul_u32_u24 v7, 12288, v6\nv_add3_u32 v5, v5, v7, 0\nv_add_u32 v5, 16384, v5")
    a(f"v_and_b32 v7, 1, v0\nv_lshl_add_u32 v5, v7, 4, v5\nv_bfe_u32 v7, v0, 1, 1\nv_lshl_add_u32 v5, v7, 3, v5")
    a(f"s_mul_i32 s34, s{sMw}, 3072\ns_xor_b32 s35, s{sMw}, 1\ns_mul_i32 s35, s35, 3072")
    for j in range(3):
        a(f"s_mul_i32 s{sT}, s{sNw}, 3\ns_add_u32 s{sT}, s{sT}, {j}\nv_xor_b32 v7, s{sT}, v6\nv_lshl_add_u32 v7, v7, 5, v5")
        a(f"v_add_u32 v{vWA(j,0)}, s34, v7\nv_add_u32 v{vWA(j,1)}, s35, v7")
    for r in range(96): a(f"v_mov_b32 v{ACC+r}, 0")
    for r in range(12): a(f"v_mov_b32 v{WC+r}, 0")
    a(f"v_mov_b32 v{ONE}, 0x3f803f80\nv_mov_b32 v{ONE+1}, 0x3f803f80")
    a(f"s_mov_b32 s{sC}, 0\ns_mov_b32 s{sRd}, 0\ns_mov_b32 s38, {-(NS-1)*SLOT & 0xffffffff}")
    a(f"s_lshl_b32 s33, s{sRb}, 2\ns_lshl_b32 s{sT}, s{sMw}, 1\ns_add_u32 s33, s33, s{sT}\ns_mul_i32 s33, s33, {FF_TILE}")
    a(f"s_mul_i32 s{sT}, s{sCb}, 6144\ns_add_u32 s33, s33, s{sT}\ns_mul_i32 s{sT}, s{sNw}, 3072\ns_add_u32 s33, s33, s{sT}\ns_add_u32 s33, s33, {WS_FF}\ns_add_u32 s34, s33, {FF_TILE}")
    a("s_waitcnt lgkmcnt(0)\ns_barrier")
    stamp_at(a, stamp, 0)

    def reads(p, s):
        e, hi = s % 2, s // 2
        out = [f"ds_read_b128 {vr(FX(p,i),4)}, v{vXA(e)} offset:{i*4096 + hi*2048}" for i in range(2)]
        for j in range(3):
            for h in range(2):
                out.append(f"ds_read_b64_tr_b16 {vr(FW(p,j)+2*h,2)}, v{vWA(j,e)} offset:{hi*6144 + h*768}")
        return out
    def small(j, x):
        if 'nosmall' not in abl:
            a(f"v_mfma_f32_4x4x4bf16_1k {vr(WC+4*j,4)}, {vr(ONE,2)}, {vr(x,2)}, {vr(WC+4*j,4)}")
    for r in reads(0, 0): a(r)
    a(".p2align 3")
    a.label(L("loop"))
    for s in range(4):
        p = s % 2
        a("s_waitcnt lgkmcnt(0)")
        if s == 3: a("s_barrier")
        rd = reads(1 - p, (s + 1) % 4)
        k = 0
        for j in range(3):
            for i in range(2):
                a(f"v_mfma_f32_32x32x16_bf16 {vr(acc(j,i),16)}, {vr(FW(p,j),4)}, {vr(FX(p,i),4)}, {vr(acc(j,i),16)}")
                if k == 0 and s == 3:
                    a(f"s_add_u32 s{sRd}, s{sRd}, {SLOT}\ns_cmp_eq_u32 s{sRd}, {NS*SLOT}\ns_cselect_b32 s{sDelta}, s38, {SLOT}\ns_cselect_b32 s{sRd}, 0, s{sRd}")
                    for r in [vXA(0)] + [vWA(jj, 0) for jj in range(3)]:
                        a(f"v_add_u32 v{r}, s{sDelta}, v{r}")
                if k == 5 and s == 3:
                    for r in [vXA(1)] + [vWA(jj, 1) for jj in range(3)]:
                        a(f"v_add_u32 v{r}, s{sDelta}, v{r}")
                for r in rd[2*k:2*k+2]: a(r)
                if p == 0: small(k % 3, FW(p, k % 3) + 2 * (k // 3))
                k += 1
    a(f"s_add_u32 s{sC}, s{sC}, 1\ns_cmp_lt_u32 s{sC}, 10\ns_cbranch_scc1 {L('loop')}")
    stamp_at(a, stamp, 1)
    a(f"s_mul_i32 s{sT}, s{sNw}, 384\ns_add_u32 s{sT}, s{sT}, {SCR}\nv_lshl_add_u32 v6, v2, 2, s{sT}")
    for j in range(3):
        a(f"ds_add_f32 v6, v{WC+4*j} offset:{j*128}")
    MU, RR, C0, C1 = 16, 18, 20, 22
    a("s_waitcnt vmcnt(0)")
    for i in range(2):
        q = PT + i * 8
        a(f"v_pk_add_f32 {vr(q,2)}, {vr(q,2)}, {vr(q+2,2)}\nv_pk_add_f32 {vr(q+4,2)}, {vr(q+4,2)}, {vr(q+6,2)}\nv_pk_add_f32 {vr(q,2)}, {vr(q,2)}, {vr(q+4,2)}")
        a(f"v_mov_b32 v{q+2}, v{q}\nv_mov_b32 v{q+3}, v{q+1}")
    a("s_waitcnt lgkmcnt(0)\ns_barrier")
    stamp_at(a, stamp, 2)
    CS = 192
    a(f"s_mul_i32 s{sT}, s{sNw}, 384\ns_add_u32 s{sT}, s{sT}, {SCR}\nv_lshl_add_u32 v6, v3, 4, s{sT}")
    for j in range(3):
        for g in range(4):
            a(f"ds_read_b128 {vr(CS+16*j+4*g,4)}, v6 offset:{j*128 + g*32}")
    k0 = -2 * 1.4426950408889634 * math.sqrt(2 / math.pi)
    for i in range(2):
        q = PT + i * 8
        a(f"v_permlane32_swap_b32 v{q}, v{q+2}\nv_permlane32_swap_b32 v{q+1}, v{q+3}\nv_pk_add_f32 {vr(q,2)}, {vr(q,2)}, {vr(q+2,2)}")
        a(f"v_mul_f32 v{MU+i}, {f2u(1/640):#x}, v{q}\nv_mul_f32 v{q+1}, {f2u(1/640):#x}, v{q+1}")
        a(f"v_fma_f32 v{q+1}, -v{MU+i}, v{MU+i}, v{q+1}\nv_max_f32 v{q+1}, 0, v{q+1}\nv_add_f32 v{RR+i}, {f2u(1e-5):#x}, v{q+1}")
        a(f"v_rsq_f32 v{q}, v{RR+i}\ns_nop 0\nv_mul_f32 v{C0+i}, {f2u(k0):#x}, v{q}\nv_mul_f32 v{q}, v{q}, v{q}")
        a(f"v_mul_f32 v{q}, {f2u(0.044715):#x}, v{q}\nv_mul_f32 v{C1+i}, v{C0+i}, v{q}")
    a("v_lshlrev_b32 v4, 4, v0")
    a("s_waitcnt lgkmcnt(0)")
    stamp_at(a, stamp, 3)
    T_ = 24
    for j in range(3):
        for i in range(2):
            A_ = acc(j, i)
            sel = lambda n, pos: (f"op_sel:[{','.join(str(i) if k == pos else '0' for k in range(n))}] "
                                  f"op_sel_hi:[{','.join(str(i) if k == pos else '1' for k in range(n))}]")
            sel2 = f"op_sel:[0,{i},{i}] op_sel_hi:[1,{i},{i}]"
            for r in range(0, 16, 2):
                a(f"v_pk_fma_f32 {vr(A_+r,2)}, {vr(CS+16*j+r,2)}, {vr(MU,2)}, {vr(A_+r,2)} {sel(3,1)} neg_lo:[0,1,0] neg_hi:[0,1,0]")
            for r in range(0, 8, 2):
                a(f"v_pk_mul_f32 {vr(T_+r,2)}, {vr(A_+r,2)}, {vr(A_+r,2)}")
            for r in range(0, 8, 2):
                a(f"v_pk_fma_f32 {vr(T_+r,2)}, {vr(T_+r,2)}, {vr(C1,2)}, {vr(C0,2)} {sel2}")
            for r in range(0, 8, 2):
                a(f"v_pk_mul_f32 {vr(T_+r,2)}, {vr(T_+r,2)}, {vr(A_+r,2)}")
            for r in range(8):
                a(f"v_exp_f32 v{T_+r}, v{T_+r}")
            for r in range(0, 8, 2):
                a(f"v_pk_mul_f32 {vr(A_+r,2)}, {vr(A_+r,2)}, {vr(A_+8+r,2)}")
            for r in range(0, 8, 2):
                a(f"v_pk_fma_f32 {vr(T_+r,2)}, {vr(T_+r,2)}, {vr(RR,2)}, {vr(RR,2)} {sel2}")
            for r in range(8):
                a(f"v_rcp_f32 v{T_+r}, v{T_+r}")
            a("s_nop 0")
            for r in range(0, 8, 2):
                a(f"v_pk_mul_f32 {vr(A_+r,2)}, {vr(A_+r,2)}, {vr(T_+r,2)}")
            for r in range(4):
                a(f"v_cvt_pk_bf16_f32 v{A_+r}, v{A_+2*r}, v{A_+2*r+1}")
            a(f"buffer_store_dwordx4 {vr(A_,4)}, v4, s[{sWS}:{sWS+3}], s{33+i} offen offset:{j*1024} {st_flags}")
    stamp_end(a, stamp, L("exit"), stamp_wg)
    a.label(L("exit"))
    a("s_endpgm")
    return dict(name=name, grid=256, block=512, lds=SCR + 1024, nvgpr=240, nstamp=4)
```

```python
from asmlib import *
from layout import *
from k_attn import srd
from k_qkv import f2u, stamp_begin, stamp_at, stamp_end

def gen_proj(a, mode, name=None, NS=4, stamp=False, st_flags="", stamp_wg=77, first=2):
    wo = mode == "wo"
    name = name or ("wo_kernel" if wo else "down_kernel")
    NCH = 5 if wo else 12
    STEP = 9216
    SLOT = 4 * STEP
    RES = NS * SLOT
    ACC = 32
    FT = lambda p: 56 + 24 * p
    FW = lambda p, j: 60 + 24 * p + 4 * j
    vTA, vWA, vRA = 8, 9, 10
    sWt, sWS, sR = 8, 12, 16
    sW, sRb, sCb, sC, sT, sRd, sDelta, sM0, sSw, sSt = 20, 21, 22, 23, 24, 25, 26, 27, 28, 29
    L = lambda s: f"{name}_{s}"

    a(f".p2align 8\n.type {name},@function\n{name}:")
    a(f"s_cmp_ge_u32 s2, 256\ns_cbranch_scc1 {L('exit')}")
    a(f"s_load_dwordx2 s[4:5], s[0:1], {ARG_WO if wo else ARG_WD}\ns_load_dwordx2 s[6:7], s[0:1], {ARG_WS}")
    a(f"s_load_dwordx2 s[36:37], s[0:1], {ARG_X if wo else ARG_OUT}")
    stamp_begin(a, stamp)
    a(f"v_lshrrev_b32 v1, 6, v0\nv_and_b32 v0, 63, v0\nv_readfirstlane_b32 s{sW}, v1")
    a(f"s_bfe_u32 s{sRb}, s2, 0x20001\ns_lshl_b32 s{sRb}, s{sRb}, 3\ns_bfe_u32 s{sT}, s2, 0x30003\ns_add_u32 s{sRb}, s{sRb}, s{sT}")
    a(f"s_and_b32 s{sCb}, s2, 1\ns_lshl_b32 s{sCb}, s{sCb}, 2\ns_lshr_b32 s{sT}, s2, 6\ns_add_u32 s{sCb}, s{sCb}, s{sT}")
    a(f"s_cmp_lt_u32 s{sW}, 4\ns_cbranch_scc1 {L('compute')}")
    a(f"s_and_b32 s{sW}, s{sW}, 3")
    vW = lambda i: 8 + i
    vW2 = lambda i: 13 + i
    vTk, vTk2, vRs = 18, 19, 20
    a("s_mov_b32 s30, 6554")
    for i in range(5):
        a(f"v_add_u32 v2, {64*i}, v0\nv_mul_u32_u24 v3, s30, v2\nv_lshrrev_b32 v3, 16, v3\nv_mul_u32_u24 v4, 10, v3\nv_sub_u32 v4, v2, v4")
        a(f"v_bfe_u32 v5, v3, 2, 1\nv_bfe_u32 v6, v3, 3, 1\nv_and_b32 v7, 0x13, v3\nv_lshl_or_b32 v7, v5, 3, v7\nv_lshl_or_b32 v7, v6, 2, v7")
        if wo:
            a(f"v_lshrrev_b32 v21, 4, v7\nv_lshl_add_u32 v21, v21, 2, v7\nv_mul_u32_u24 v21, 1280, v21\nv_lshl_add_u32 v{vW(i)}, v4, 4, v21")
            a(f"v_lshrrev_b32 v21, 3, v7\nv_mul_u32_u24 v21, 40, v21\nv_and_b32 v22, 3, v7\nv_add3_u32 v21, v21, v22, 16\nv_mul_u32_u24 v22, 20, v6\nv_add_u32 v21, v21, v22")
            a(f"v_mul_u32_u24 v21, 1280, v21\nv_lshl_add_u32 v{vW2(i)}, v4, 4, v21")
        else:
            a(f"v_mul_u32_u24 v21, 1280, v7\nv_lshl_add_u32 v{vW(i)}, v4, 4, v21")
    a(f"v_and_b32 v2, 15, v0\nv_lshlrev_b32 v2, 4, v2")
    if wo:
        a(f"v_lshrrev_b32 v3, 5, v0\nv_mul_u32_u24 v3, 1280, v3\nv_bfe_u32 v4, v0, 4, 1\nv_lshl_add_u32 v3, v4, 9, v3\nv_add_u32 v{vTk}, v2, v3")
        a(f"v_bfe_u32 v3, v0, 3, 2\nv_lshrrev_b32 v4, 5, v0\nv_lshl_add_u32 v3, v3, 1, v4\nv_mul_u32_u24 v3, 1280, v3\nv_and_b32 v4, 7, v0\nv_lshl_add_u32 v3, v4, 4, v3\nv_add_u32 v{vTk2}, 1024, v3")
    else:
        a(f"v_lshrrev_b32 v3, 4, v0\nv_lshl_add_u32 v{vTk}, v3, 9, v2\nv_lshlrev_b32 v{vRs}, 4, v0")
    TILE = O_TILE if wo else FF_TILE
    wstep, tstep = (40 * 1280, 2560) if wo else (32 * 1280, 2048)
    a(f"s_mul_i32 s{sSw}, s{sW}, {wstep}\ns_mul_i32 s{sT}, s{sCb}, 160\ns_add_u32 s{sSw}, s{sSw}, s{sT}")
    a(f"s_mul_i32 s{sSt}, s{sRb}, {2*TILE}\ns_mul_i32 s31, s{sW}, {tstep}\ns_add_u32 s{sSt}, s{sSt}, s31\ns_add_u32 s{sSt}, s{sSt}, {WS_O if wo else WS_FF}")
    if wo:
        a(f"s_mul_i32 s32, s{sW}, {160*1280}\ns_add_u32 s32, s32, s{sT}")
        a(f"s_mul_i32 s33, s{sRb}, {2*TILE}\ns_mul_i32 s31, s{sW}, {8*1280}\ns_add_u32 s33, s33, s31\ns_add_u32 s33, s33, {WS_O}")
    a(f"s_mul_i32 s{sM0}, s{sW}, {STEP}")
    a("s_waitcnt lgkmcnt(0)")
    srd(a, sWt, 4, (D if wo else DF) * D * 2)
    srd(a, sWS, 6, WS_END)
    if wo: srd(a, sR, 36, S * D * 2)
    issued = 0
    nout = []
    def issue():
        nonlocal issued
        c = issued
        rem = wo and c == 4
        base = (c % NS) * SLOT
        for w in range(4):
            so = (w // 2) * TILE + (w % 2) * (128 if rem else 256)
            a(f"s_add_u32 m0, s{sM0}, {base + 5120 + w*1024}\ns_add_u32 s{sT}, s{33 if rem else sSt}, {so}")
            a(f"buffer_load_dwordx4 v{vTk2 if rem else vTk}, s[{sWS}:{sWS+3}], s{sT} offen lds")
        for i in range(5):
            a(f"s_add_u32 m0, s{sM0}, {base + i*1024}\ns_nop 0")
            a(f"buffer_load_dwordx4 v{(vW2 if rem else vW)(i)}, s[{sWt}:{sWt+3}], s{32 if rem else sSw} offen lds")
        a(f"s_add_u32 s{sSw}, s{sSw}, {4*wstep}\ns_add_u32 s{sSt}, s{sSt}, {4*tstep}")
        n = 9
        if c == NCH - 1:
            for k in range(3):
                a(f"s_mul_i32 s34, s{sW}, 3\ns_add_u32 s34, s34, {k}\ns_min_u32 s34, s34, 9\ns_lshl_b32 s35, s34, 10\ns_add_u32 m0, s35, {RES}")
                if wo:
                    a(f"s_lshl_b32 s34, s34, 6\nv_add_u32 v2, s34, v0\nv_mul_u32_u24 v3, s30, v2\nv_lshrrev_b32 v3, 16, v3\nv_mul_u32_u24 v4, 1120, v3\nv_lshl_add_u32 v4, v2, 4, v4")
                    a(f"s_mul_i32 s34, s{sRb}, {64*1280}\ns_mul_i32 s35, s{sCb}, 160\ns_add_u32 s34, s34, s35")
                    a(f"buffer_load_dwordx4 v4, s[{sR}:{sR+3}], s34 offen lds")
                else:
                    a(f"s_cmp_ge_u32 s34, 5\ns_cselect_b32 s34, {H_TILE - 5120}, 0\ns_add_u32 s34, s34, s35\ns_mul_i32 s35, s{sRb}, {2*H_TILE}\ns_add_u32 s34, s34, s35")
                    a(f"s_mul_i32 s35, s{sCb}, 5120\ns_add_u32 s34, s34, s35\ns_add_u32 s34, s34, {WS_H}")
                    a(f"buffer_load_dwordx4 v{vRs}, s[{sWS}:{sWS+3}], s34 offen lds")
            n = 12
        nout.append(n)
        issued += 1
    for b in range(NCH):
        while issued < min(NCH, b + first if b == 0 else b - 1 + NS):
            issue()
        newer = sum(nout[b + 1:]) + (3 if b == NCH - 1 else 0)
        a(f"s_waitcnt vmcnt({newer})\ns_barrier")
    a("s_waitcnt vmcnt(0)\ns_barrier\ns_endpgm")

    a.label(L("compute"))
    a(f"s_lshl_b32 s{sT}, s{sW}, 10\ns_add_u32 s{sT}, s{sT}, 5120\nv_lshl_add_u32 v{vTA}, v0, 4, s{sT}")
    if wo: a(f"v_lshl_add_u32 v11, v0, 3, s{sT}\nv_add_u32 v11, {(4 % NS) * SLOT}, v11")
    a(f"v_bfe_u32 v2, v0, 2, 2\nv_bfe_u32 v3, v0, 4, 1\nv_lshl_add_u32 v2, v3, 2, v2\nv_lshrrev_b32 v3, 5, v0\nv_lshl_add_u32 v2, v3, 4, v2")
    a(f"v_mul_u32_u24 v2, 160, v2\nv_and_b32 v3, 3, v0\nv_lshl_add_u32 v{vWA}, v3, 3, v2")
    a(f"v_and_b32 v2, 15, v0\nv_lshrrev_b32 v3, 4, v0")
    if wo:
        a(f"s_lshl_b32 s{sT}, s{sW}, 4\nv_add_u32 v4, s{sT}, v2\nv_mul_u32_u24 v4, 160, v4\nv_lshl_add_u32 v{vRA}, v3, 3, v4")
    else:
        a(f"s_lshr_b32 s{sT}, s{sW}, 1\ns_mul_i32 s{sT}, s{sT}, 5120\ns_and_b32 s30, s{sW}, 1\ns_lshl_b32 s30, s30, 8\ns_add_u32 s{sT}, s{sT}, s30")
        a(f"v_lshrrev_b32 v4, 1, v3\nv_lshlrev_b32 v4, 9, v4\nv_lshl_add_u32 v4, v2, 4, v4\nv_and_b32 v5, 1, v3\nv_lshl_add_u32 v4, v5, 3, v4\nv_add_u32 v{vRA}, s{sT}, v4")
    a(f"v_add_u32 v{vRA}, {RES}, v{vRA}")
    for r in range(20): a(f"v_mov_b32 v{ACC+r}, 0")
    if wo:
        a(f"v_lshrrev_b32 v4, 1, v3\nv_lshlrev_b32 v4, 9, v4\nv_lshl_add_u32 v13, v2, 4, v4\nv_and_b32 v5, 1, v3\nv_lshl_add_u32 v12, v5, 10, v13")
        a(f"s_lshl_b32 s31, s{sRb}, 1\ns_lshr_b32 s{sT}, s{sW}, 1\ns_add_u32 s31, s31, s{sT}\ns_mul_i32 s31, s31, {H_TILE}\ns_mul_i32 s{sT}, s{sCb}, 5120\ns_add_u32 s31, s31, s{sT}")
        a(f"s_and_b32 s{sT}, s{sW}, 1\ns_lshl_b32 s{sT}, s{sT}, 8\ns_add_u32 s31, s31, s{sT}\ns_add_u32 s31, s31, {WS_H}")
        a(f"s_mul_i32 s32, s{sCb}, {ST_BLK}\ns_lshl_b32 s{sT}, s{sRb}, 9\ns_add_u32 s32, s32, s{sT}\ns_lshl_b32 s{sT}, s{sW}, 7\ns_add_u32 s32, s32, s{sT}\ns_add_u32 s32, s32, {WS_ST}")
        a(f"v_lshlrev_b32 v14, 3, v2")
    else:
        a(f"v_mul_u32_u24 v4, 1280, v2\nv_lshrrev_b32 v5, 1, v3\nv_lshl_add_u32 v13, v5, 4, v4\nv_and_b32 v5, 1, v3\nv_lshl_add_u32 v12, v5, 5, v13")
        a(f"s_lshl_b32 s31, s{sRb}, 2\ns_add_u32 s31, s31, s{sW}\ns_mul_i32 s31, s31, {16*1280}\ns_mul_i32 s{sT}, s{sCb}, 160\ns_add_u32 s31, s31, s{sT}")
    a("s_waitcnt lgkmcnt(0)")
    if wo: srd(a, sWS, 6, WS_END)
    else: srd(a, sR, 36, S * D * 2)
    a(f"s_mov_b32 s{sC}, 0\ns_mov_b32 s{sRd}, 0\ns_mov_b32 s38, {-(NS-1)*SLOT & 0xffffffff}")
    a("s_barrier")
    stamp_at(a, stamp, 0)

    def reads(p, s, rem=False):
        if rem:
            out = [f"ds_read_b64 {vr(FT(p)+2*e,2)}, v11 offset:{s*STEP + e*512}" for e in range(2)]
        else:
            out = [f"ds_read_b128 {vr(FT(p),4)}, v{vTA} offset:{s*STEP}"]
        for j in range(5):
            for h in range(2):
                out.append(f"ds_read_b64_tr_b16 {vr(FW(p,j)+2*h,2)}, v{vWA} offset:{s*STEP + h*1280 + j*32}")
        return out
    def chunk(next_rem, cur_rem, last):
        for s in range(4):
            p = s % 2
            a("s_waitcnt lgkmcnt(0)")
            if s == 3:
                a("s_barrier")
                if not last:
                    a(f"s_add_u32 s{sRd}, s{sRd}, {SLOT}\ns_cmp_eq_u32 s{sRd}, {NS*SLOT}\ns_cselect_b32 s{sDelta}, s38, {SLOT}\ns_cselect_b32 s{sRd}, 0, s{sRd}")
                    a(f"v_add_u32 v{vTA}, s{sDelta}, v{vTA}\nv_add_u32 v{vWA}, s{sDelta}, v{vWA}")
            if s == 3 and last:
                rd = [f"ds_read_b64 {vr(FW(1-p,0)+2*j,2)}, v{vRA} offset:{j*(32 if wo else 1024)}" for j in range(5)]
            else:
                rd = reads(1 - p, (s + 1) % 4, next_rem if s == 3 else cur_rem)
            per = -(-len(rd) // 4)
            for j in range(5):
                a(f"v_mfma_f32_16x16x32_bf16 {vr(ACC+4*j,4)}, {vr(FW(p,j),4)}, {vr(FT(p),4)}, {vr(ACC+4*j,4)}")
                for r in rd[j*per:(j+1)*per]: a(r)
    for r in reads(0, 0): a(r)
    a(".p2align 3")
    a.label(L("loop"))
    chunk(False, False, False)
    nloop = NCH - (2 if wo else 1)
    a(f"s_add_u32 s{sC}, s{sC}, 1\ns_cmp_lt_u32 s{sC}, {nloop}\ns_cbranch_scc1 {L('loop')}")
    if wo:
        chunk(True, False, False)
        chunk(False, True, True)
    else:
        chunk(False, False, True)
    stamp_at(a, stamp, 1)
    R_ = FW(0, 0)
    U = 104
    a("s_waitcnt lgkmcnt(0)")
    for j in range(5):
        for e in range(2):
            a(f"v_lshlrev_b32 v{U+4*j+2*e}, 16, v{R_+2*j+e}\nv_and_b32 v{U+4*j+2*e+1}, 0xffff0000, v{R_+2*j+e}")
    for r in range(0, 20, 2):
        a(f"v_pk_add_f32 {vr(ACC+r,2)}, {vr(ACC+r,2)}, {vr(U+r,2)}")
    for r in range(10):
        a(f"v_cvt_pk_bf16_f32 v{U+r}, v{ACC+2*r}, v{ACC+2*r+1}")
    a(f"v_mov_b32 v{U+10}, v{U+8}\nv_mov_b32 v{U+11}, v{U+9}")
    if wo:
        a(f"v_pk_mul_f32 v[6:7], {vr(ACC,2)}, {vr(ACC,2)}\nv_pk_add_f32 v[4:5], {vr(ACC,2)}, {vr(ACC+2,2)}")
    else:
        a("s_nop 0")
    dst = f"s[{sWS}:{sWS+3}]" if wo else f"s[{sR}:{sR+3}]"
    pair = 2048 if wo else 64
    for k in range(3):
        a(f"v_permlane16_swap_b32 v{U+4*k}, v{U+4*k+2}\nv_permlane16_swap_b32 v{U+4*k+1}, v{U+4*k+3}")
    for k in range(2):
        a(f"buffer_store_dwordx4 {vr(U+4*k,4)}, v12, {dst}, s31 offen offset:{k*pair} {st_flags}")
    a(f"s_add_u32 s31, s31, {2*pair}\ns_mov_b32 exec_lo, 0xffff\ns_mov_b32 exec_hi, 0xffff")
    a(f"buffer_store_dwordx4 {vr(U+8,4)}, v13, {dst}, s31 offen {st_flags}")
    if wo:
        a("s_mov_b64 exec, -1")
        a(f"v_pk_fma_f32 v[6:7], {vr(ACC+2,2)}, {vr(ACC+2,2)}, v[6:7]")
        for r in range(4, 20, 2):
            a(f"v_pk_add_f32 v[4:5], v[4:5], {vr(ACC+r,2)}\nv_pk_fma_f32 v[6:7], {vr(ACC+r,2)}, {vr(ACC+r,2)}, v[6:7]")
        a("v_add_f32 v4, v4, v5\nv_add_f32 v5, v6, v7\nv_mov_b32 v6, v4\nv_mov_b32 v7, v5\ns_nop 0")
        a("v_permlane32_swap_b32 v4, v6\nv_permlane32_swap_b32 v5, v7\nv_pk_add_f32 v[4:5], v[4:5], v[6:7]\ns_nop 0")
        a("v_mov_b32 v6, v4\nv_mov_b32 v7, v5\ns_nop 1")
        a("v_permlane16_swap_b32 v4, v6\nv_permlane16_swap_b32 v5, v7\nv_pk_add_f32 v[4:5], v[4:5], v[6:7]")
        a("s_mov_b64 exec, 0xffff")
        a(f"buffer_store_dwordx2 v[4:5], v14, s[{sWS}:{sWS+3}], s32 offen {st_flags}")
    if stamp: a("s_mov_b64 exec, -1")
    stamp_end(a, stamp, L("exit"), stamp_wg)
    a.label(L("exit"))
    a("s_endpgm")
    return dict(name=name, grid=256, block=512, lds=RES + 10240, nvgpr=128, nstamp=4)
```

```python
from asmlib import *
from layout import *
from k_attn import srd
import struct

def f2u(x): return struct.unpack("<I", struct.pack("<f", x))[0]
QSCALE = 1.4426950408889634 / 20 ** 0.5
OOB = 0x40000000

def stamp_begin(a, on):
    if on: a(f"s_load_dwordx2 s[90:91], s[0:1], {ARG_DBG}\ns_memtime s[80:81]\ns_memrealtime s[88:89]")
def stamp_at(a, on, k):
    if on: a(f"s_memtime s[{82+2*k}:{83+2*k}]")
def stamp_end(a, on, exit_label, wg=77, sW=20):
    if not on: return
    a("s_waitcnt vmcnt(0)\ns_memtime s[86:87]\ns_memrealtime s[92:93]\ns_waitcnt lgkmcnt(0)")
    a(f"s_cmp_lg_u32 s2, {wg}\ns_cbranch_scc1 {exit_label}")
    a("s_sub_u32 s82, s82, s80\ns_sub_u32 s84, s84, s80\ns_sub_u32 s86, s86, s80\ns_sub_u32 s92, s92, s88")
    a(f"v_mov_b32 v4, s82\nv_mov_b32 v5, s84\nv_mov_b32 v6, s86\nv_mov_b32 v7, s92\ns_lshl_b32 s3, s{sW}, 4\nv_mov_b32 v1, s3")
    a("s_mov_b64 exec, 1\nglobal_store_dwordx4 v1, v[4:7], s[90:91]")

def gen_qkv(a, name="qkv_kernel", NS=4, stamp=False, st_flags="", stamp_wg=77, abl=(), first=2):
    SLOT = 32768
    ACC = 64
    acc = lambda j, i: ACC + (j * 2 + i) * 16
    FX = lambda p, i: 32 + p * 16 + i * 4
    FW = lambda p, j: 32 + p * 16 + 8 + j * 4
    XS, XQ, WC, ONE = 128, 132, 136, 140
    vXA = lambda i, s: 8 + i * 4 + s
    vWA = lambda j: 16 + j
    vDX = lambda k: 18 + k
    vDW = lambda k: 22 + k
    sX, sWq, sWS = 8, 12, 16
    sW, sRb, sCb, sMw, sNw, sC = 20, 21, 22, 23, 24, 25
    sSrcX, sSrcW, sM0, sDelta, sRd, sT = 26, 27, 28, 29, 30, 31
    sTau = (32, 33)
    sTj = (34, 35)
    L = lambda s: f"{name}_{s}"

    def reads(p, s):
        out = []
        for i in range(2):
            out.append(f"ds_read_b128 {vr(FX(p,i),4)}, v{vXA(i,s)}")
        for j in range(2):
            for h in range(2):
                out.append(f"ds_read_b64_tr_b16 {vr(FW(p,j)+2*h,2)}, v{vWA(j)} offset:{s*4096 + h*1024}")
        return out

    def params():
        for P in range(3):
            a(f"s_mul_i32 s{sT}, s{sCb}, 6\ns_add_u32 s{sT}, s{sT}, {2*P}")
            a(f"s_cmp_lt_u32 s{sT}, 32\ns_cselect_b32 s{44+P}, {f2u(QSCALE):#x}, 1.0")
            a(f"s_mov_b32 s39, {KV_HEAD}\ns_cselect_b32 s{48+P}, {Q_HEAD}, s39")
            a(f"s_cbranch_scc0 {L(f'pk{P}')}")
            for i in range(2):
                a(f"s_mul_i32 s{52+2*P+i}, s{sT}, {Q_HEAD}\ns_mul_i32 s39, s{sTau[i]}, 1280\ns_add_u32 s{52+2*P+i}, s{52+2*P+i}, s39")
                a(f"s_add_u32 s{58+2*P+i}, s{52+2*P+i}, 1024")
            a(f"s_branch {L(f'pd{P}')}")
            a.label(L(f"pk{P}"))
            a(f"s_mul_i32 s40, s{sT}, {KV_HEAD}\ns_add_u32 s40, s40, {(WS_KV - 32*KV_HEAD) & 0xffffffff}")
            a(f"s_cmp_lt_u32 s{sT}, 64\ns_cselect_b32 s40, s40, {OOB}")
            for i in range(2):
                a(f"s_lshr_b32 s39, s{sTau[i]}, 3\ns_mul_i32 s39, s39, {KV_CHUNK}\ns_add_u32 s39, s39, s40\ns_and_b32 s41, s{sTau[i]}, 7")
                a(f"s_lshl_b32 s42, s41, 10\ns_add_u32 s{52+2*P+i}, s39, s42")
                a(f"s_lshl_b32 s42, s41, 8\ns_add_u32 s39, s39, s42\ns_add_u32 s{58+2*P+i}, s39, {KV_K2}")
            a.label(L(f"pd{P}"))

    a(f".p2align 8\n.type {name},@function\n{name}:")
    a(f"s_cmp_ge_u32 s2, 256\ns_cbranch_scc1 {L('exit')}")
    a(f"s_load_dwordx4 s[4:7], s[0:1], {ARG_X}\ns_load_dwordx2 s[36:37], s[0:1], {ARG_WS}")
    stamp_begin(a, stamp)
    a(f"v_lshrrev_b32 v1, 6, v0\nv_and_b32 v0, 63, v0\nv_readfirstlane_b32 s{sW}, v1")
    a(f"s_bfe_u32 s{sRb}, s2, 0x20001\ns_lshl_b32 s{sRb}, s{sRb}, 2\ns_bfe_u32 s{sT}, s2, 0x20003\ns_add_u32 s{sRb}, s{sRb}, s{sT}")
    a(f"s_and_b32 s{sCb}, s2, 1\ns_lshl_b32 s{sCb}, s{sCb}, 3\ns_lshr_b32 s{sT}, s2, 5\ns_add_u32 s{sCb}, s{sCb}, s{sT}")
    a(f"s_cmp_lt_u32 s{sW}, 4\ns_cbranch_scc1 {L('compute')}")
    a(f"s_and_b32 s{sW}, s{sW}, 3")
    a(f"v_lshrrev_b32 v2, 3, v0\nv_mul_u32_u24 v2, 1280, v2\nv_lshrrev_b32 v3, 4, v0\nv_and_b32 v4, 7, v0\nv_xor_b32 v4, v4, v3")
    a(f"v_lshl_add_u32 v{vDX(0)}, v4, 4, v2\nv_xor_b32 v4, 4, v4\nv_lshl_add_u32 v{vDX(1)}, v4, 4, v2")
    a(f"v_add_u32 v{vDX(1)}, {8*1280-1024}, v{vDX(1)}\nv_add_u32 v{vDX(2)}, {2*(8*1280-1024)}, v{vDX(0)}\nv_add_u32 v{vDX(3)}, {2*(8*1280-1024)}, v{vDX(1)}")
    a(f"v_lshlrev_b32 v4, 2, v3\nv_sub_u32 v4, v0, v4\nv_and_b32 v4, 15, v4")
    a(f"s_lshl_b32 s{sSrcX}, s{sRb}, 2\ns_add_u32 s{sSrcX}, s{sSrcX}, s{sW}\ns_mul_i32 s{sSrcX}, s{sSrcX}, {32*1280}")
    a(f"s_mul_i32 s{sSrcW}, s{sW}, {16*3840}")
    a(f"s_cmp_ge_u32 s{sCb}, 11\ns_cbranch_scc1 {L('vsrc')}")
    a(f"v_lshrrev_b32 v5, 2, v4\nv_add_u32 v5, v4, v5\nv_bfe_u32 v6, v4, 1, 1\nv_add_u32 v5, v5, v6")
    a(f"v_mul_u32_u24 v6, 5, v4\nv_subrev_u32 v6, 58, v6\nv_min_i32 v6, 15, v6\nv_cmp_le_u32 vcc, 12, v4")
    a(f"s_mul_i32 s{sT}, s{sCb}, 240\ns_add_u32 s{sSrcW}, s{sSrcW}, s{sT}")
    a(f"v_cndmask_b32 v4, v5, v6, vcc\ns_branch {L('srcdone')}")
    a.label(L("vsrc"))
    a(f"s_lshl_b32 s{sT}, s{sCb}, 8\ns_add_u32 s{sSrcW}, s{sSrcW}, s{sT}\ns_sub_u32 s{sSrcW}, s{sSrcW}, {11*256-2560}")
    a.label(L("srcdone"))
    a(f"v_mul_u32_u24 v3, 3840, v3\nv_lshl_add_u32 v{vDW(0)}, v4, 4, v3")
    for k in range(1, 4):
        a(f"v_add_u32 v{vDW(k)}, {k*(4*3840-1024)}, v{vDW(0)}")
    a(f"s_lshl_b32 s{sM0}, s{sW}, 12")
    a("s_waitcnt lgkmcnt(0)")
    srd(a, sX, 4, S * D * 2)
    srd(a, sWq, 6, D * 3 * D * 2)
    issued = 0
    def issue():
        nonlocal issued
        a(f"s_add_u32 s{sT}, s{sM0}, {(issued % NS) * SLOT}\ns_mov_b32 m0, s{sT}\ns_add_u32 s{sT}, s{sT}, 16384")
        for k in range(4):
            a(f"buffer_load_dwordx4 v{vDX(k)}, s[{sX}:{sX+3}], s{sSrcX} offen offset:{k*1024} lds")
        a(f"s_mov_b32 m0, s{sT}\ns_add_u32 s{sSrcX}, s{sSrcX}, 128")
        for k in range(4):
            a(f"buffer_load_dwordx4 v{vDW(k)}, s[{sWq}:{sWq+3}], s{sSrcW} offen offset:{k*1024} lds")
        a(f"s_add_u32 s{sSrcW}, s{sSrcW}, {64*3840}")
        issued += 1
    for b in range(10):
        while issued < min(10, b + first if b == 0 else b - 1 + NS):
            issue()
        a(f"s_waitcnt vmcnt({8*(issued-1-b)})\ns_barrier")
    a("s_barrier\ns_barrier\ns_barrier\ns_endpgm")
    a.label(L("compute"))
    a(f"s_lshr_b32 s{sMw}, s{sW}, 1\ns_and_b32 s{sNw}, s{sW}, 1")
    for i in range(2):
        a(f"s_xor_b32 s{sT}, s{sNw}, {i}\ns_lshl_b32 s{sTau[i]}, s{sMw}, 1\ns_add_u32 s{sTau[i]}, s{sTau[i]}, s{sT}")
        a(f"s_xor_b32 s{sT}, s{sMw}, {i}\ns_lshl_b32 s{sTj[i]}, s{sNw}, 1\ns_add_u32 s{sTj[i]}, s{sTj[i]}, s{sT}")
    a(f"v_and_b32 v2, 31, v0\nv_lshrrev_b32 v3, 5, v0")
    a(f"s_cmp_ge_u32 s{sCb}, 11\ns_cbranch_scc0 {L('norowperm')}")
    a(f"v_bfe_u32 v4, v0, 2, 1\nv_bfe_u32 v5, v0, 3, 1\nv_and_b32 v2, 0x13, v0\nv_lshl_or_b32 v2, v4, 3, v2\nv_lshl_or_b32 v2, v5, 2, v2")
    a.label(L("norowperm"))
    a(f"v_bfe_u32 v4, v2, 1, 3\nv_xor_b32 v4, v4, v3\nv_lshlrev_b32 v5, 7, v2")
    for s in range(4):
        a(f"v_xor_b32 v6, {2*s}, v4\nv_lshl_add_u32 v6, v6, 4, v5")
        for i in range(2):
            a(f"s_lshl_b32 s{sT}, s{sTau[i]}, 12\nv_add_u32 v{vXA(i,s)}, s{sT}, v6")
    a(f"v_bfe_u32 v4, v0, 2, 2\nv_lshl_add_u32 v5, v3, 3, v4\nv_lshlrev_b32 v5, 8, v5\nv_add_u32 v5, 16384, v5")
    a(f"v_bfe_u32 v6, v0, 4, 1\nv_lshlrev_b32 v6, 1, v6\nv_lshl_add_u32 v6, v4, 2, v6")
    a(f"v_and_b32 v26, 1, v0\nv_bfe_u32 v27, v0, 1, 1")
    for j in range(2):
        a(f"s_cmp_lt_u32 s{sTj[j]}, 3\ns_cselect_b32 s{sT}, 1, 0\ns_cmp_lt_u32 s{sCb}, 11\ns_cselect_b32 s{sT}, s{sT}, 0")
        a(f"s_cmp_eq_u32 s{sT}, 1\ns_cselect_b64 vcc, -1, 0\ns_lshl_b32 s{sT}, s{sTj[j]}, 2")
        a(f"v_cndmask_b32 v28, v27, v26, vcc\nv_cndmask_b32 v29, v26, v27, vcc")
        a(f"v_add3_u32 v28, v28, v6, s{sT}\nv_and_b32 v28, 15, v28\nv_lshl_add_u32 v28, v28, 4, v5\nv_lshl_add_u32 v{vWA(j)}, v29, 3, v28")
    for r in range(64): a(f"v_mov_b32 v{ACC+r}, 0")
    for r in range(12): a(f"v_mov_b32 v{XS+r}, 0")
    a(f"v_mov_b32 v{ONE}, 0x3f803f80\nv_mov_b32 v{ONE+1}, 0x3f803f80")
    for i in range(2):
        a(f"s_lshl_b32 s{sT}, s{sRb}, 2\ns_add_u32 s{sTau[i]}, s{sTau[i]}, s{sT}")
    a(f"s_mov_b32 s{sC}, 0\ns_mov_b32 s{sRd}, 0\ns_mov_b32 s38, {-(NS-1)*SLOT & 0xffffffff}")
    a("s_waitcnt lgkmcnt(0)")
    srd(a, sWS, 36, WS_END)
    a(f"s_cmp_ge_u32 s{sCb}, 11\ns_cbranch_scc1 {L('noparam')}")
    params()
    a.label(L("noparam"))
    a("s_barrier")
    stamp_at(a, stamp, 0)
    for r in reads(0, 0): a(r)
    a(f"s_cmp_ge_u32 s{sCb}, 11\ns_cbranch_scc1 {L('loopV')}")

    def small(d, x, y):
      if 'nosmall' not in abl and not ('noxs' in abl and d == XS): a(f"v_mfma_f32_4x4x4bf16_1k {vr(d,4)}, {vr(x,2)}, {vr(y,2)}, {vr(d,4)}")
    def loop(tag):
        a(".p2align 3")
        a.label(L("loop" + tag))
        for s in range(4):
            p = s % 2
            def big(j, i):
                x, w = vr(FX(p, i), 4), vr(FW(p, j), 4)
                if tag == "V": w, x = x, w
                a(f"v_mfma_f32_32x32x16_bf16 {vr(acc(j,i),16)}, {w}, {x}, {vr(acc(j,i),16)}")
            a("s_waitcnt lgkmcnt(0)")
            if s == 3:
                a("s_barrier")
            big(0, 0)
            if s == 3:
                a(f"s_add_u32 s{sRd}, s{sRd}, {SLOT}\ns_cmp_eq_u32 s{sRd}, {NS*SLOT}\ns_cselect_b32 s{sDelta}, s38, {SLOT}\ns_cselect_b32 s{sRd}, 0, s{sRd}")
                for r in [vXA(0,0), vXA(1,0), vWA(0), vWA(1)]:
                    a(f"v_add_u32 v{r}, s{sDelta}, v{r}")
            rd = reads(1 - p, (s + 1) % 4)
            if 'nods' in abl: rd = []
            for r in rd[:3]: a(r)
            small(XS, ONE, FX(p,0)); small(XQ, FX(p,0), FX(p,0)); small(WC, ONE, FW(p,0))
            big(0, 1)
            for r in rd[3:]: a(r)
            small(XS, ONE, FX(p,0)+2); small(XQ, FX(p,0)+2, FX(p,0)+2); small(WC, ONE, FW(p,0)+2)
            big(1, 0)
            if s == 3:
                for i in range(2):
                    for s2 in range(1, 4):
                        a(f"v_add_u32 v{vXA(i,s2)}, s{sDelta}, v{vXA(i,s2)}")
            big(1, 1)
        a(f"s_add_u32 s{sC}, s{sC}, 1\ns_cmp_lt_u32 s{sC}, 10\ns_cbranch_scc1 {L('loop'+tag)}")

    STAT = 0
    def stats():
        stamp_at(a, stamp, 1)
        a("s_waitcnt lgkmcnt(0)\ns_barrier")
        a(f"v_and_b32 v4, 3, v0\nv_cmp_eq_u32 vcc, 1, v4\nv_cmp_eq_u32 s[40:41], 2, v4\nv_cmp_eq_u32 s[42:43], 3, v4")
        a(f"s_and_b32 s{sT}, s{sTau[0]}, 3\ns_lshl_b32 s{sT}, s{sT}, 7\nv_lshl_add_u32 v6, v2, 2, s{sT}")
        a(f"v_cndmask_b32 v{XQ}, v{XQ}, v{XQ+1}, vcc\nv_cndmask_b32 v{XQ}, v{XQ}, v{XQ+2}, s[40:41]\nv_cndmask_b32 v{XQ}, v{XQ}, v{XQ+3}, s[42:43]")
        a(f"s_lshl_b32 s{sT}, s{sTj[0]}, 7\nv_and_b32 v7, 31, v0\nv_lshl_add_u32 v7, v7, 2, s{sT}")
        a(f"v_mov_b32 v{XQ+1}, v{XQ}\ns_nop 0")
        a(f"v_permlane32_swap_b32 v{XS}, v{XS+1}\nv_permlane32_swap_b32 v{WC}, v{WC+1}\nv_permlane32_swap_b32 v{XQ}, v{XQ+1}")
        a(f"v_add_f32 v{XS}, v{XS}, v{XS+1}\nv_add_f32 v{WC}, v{WC}, v{WC+1}\nv_add_f32 v{XQ}, v{XQ}, v{XQ+1}")
        a(f"v_mul_f32 v{XS}, {f2u(1/640):#x}, v{XS}\nv_mul_f32 v{XQ}, {f2u(1/640):#x}, v{XQ}")
        a(f"v_fma_f32 v{XQ}, -v{XS}, v{XS}, v{XQ}\nv_max_f32 v{XQ}, 0, v{XQ}\nv_add_f32 v{XQ}, {f2u(1e-5):#x}, v{XQ}\nv_rsq_f32 v{XQ}, v{XQ}")
        a(f"ds_write_b32 v7, v{WC} offset:{STAT+1024}")
        a(f"v_mul_f32 v{XS}, v{XS}, v{XQ}")
        a(f"ds_write_b32 v6, v{XQ} offset:{STAT}\nds_write_b32 v6, v{XS} offset:{STAT+512}")
        a("s_waitcnt lgkmcnt(0)\ns_barrier")

    loop("Q")
    stats()
    CS = 144
    RS, MR = (26, 28), (27, 29)
    for i in range(2):
        a(f"s_and_b32 s{sT}, s{sTau[i]}, 3\ns_lshl_b32 s{sT}, s{sT}, 7\nv_lshl_add_u32 v6, v2, 2, s{sT}")
        a(f"ds_read_b32 v{RS[i]}, v6 offset:{STAT}\nds_read_b32 v{MR[i]}, v6 offset:{STAT+512}")
    for j in range(2):
        a(f"s_lshl_b32 s{sT}, s{sTj[j]}, 7\nv_lshl_add_u32 v7, v3, 4, s{sT}")
        for g in range(4):
            a(f"ds_read_b128 {vr(CS+16*j+4*g,4)}, v7 offset:{STAT+1024+32*g}")
    a(f"v_lshlrev_b32 v4, 4, v0\nv_lshlrev_b32 v5, 3, v2")
    a("s_waitcnt lgkmcnt(0)")
    for j in range(2):
        a(f"s_cmp_eq_u32 s{sTj[j]}, 1\ns_cselect_b32 s64, s45, s44\ns_cselect_b32 s68, s49, s48\ns_cselect_b32 s69, s54, s52\ns_cselect_b32 s70, s55, s53")
        a(f"s_cmp_eq_u32 s{sTj[j]}, 2\ns_cselect_b32 s64, s46, s64\ns_cselect_b32 s68, s50, s68\ns_cselect_b32 s69, s56, s69\ns_cselect_b32 s70, s57, s70")
        a(f"s_cmp_eq_u32 s{sTj[j]}, 3\ns_cselect_b32 s65, s45, s64\ns_cselect_b32 s66, s46, s64")
        for i in range(2):
            A_ = acc(j, i)
            a(f"v_mul_f32 v30, s64, v{RS[i]}\nv_mul_f32 v31, s64, v{MR[i]}")
            for g in range(4):
                if g in (1, 2):
                    a(f"v_mul_f32 v30, s{64+g}, v{RS[i]}\nv_mul_f32 v31, s{64+g}, v{MR[i]}")
                for r in (0, 2):
                    q = A_ + 4 * g + r
                    a(f"v_pk_mul_f32 {vr(q,2)}, {vr(q,2)}, v[30:31] op_sel_hi:[1,0]")
                    a(f"v_pk_fma_f32 {vr(q,2)}, {vr(CS+16*j+4*g+r,2)}, v[30:31], {vr(q,2)} op_sel:[0,1,0] op_sel_hi:[1,1,1] neg_lo:[0,1,0] neg_hi:[0,1,0]")
            for r in range(8):
                a(f"v_cvt_pk_bf16_f32 v{A_+r}, v{A_+2*r}, v{A_+2*r+1}")
        a(f"s_cbranch_scc1 {L(f'rem{j}')}")
        for i in range(2):
            A_ = acc(j, i)
            a(f"buffer_store_dwordx4 {vr(A_,4)}, v4, s[{sWS}:{sWS+3}], s{69+i} offen {st_flags}")
            a(f"s_add_u32 s{69+i}, s{69+i}, s68")
            a(f"buffer_store_dwordx4 {vr(A_+4,4)}, v4, s[{sWS}:{sWS+3}], s{69+i} offen {st_flags}")
        a(f"s_branch {L(f'std{j}')}")
        a.label(L(f"rem{j}"))
        for g in range(3):
            a(f"v_mad_u32_u24 v6, v3, s{48+g}, v5")
            for i in range(2):
                a(f"buffer_store_dwordx2 {vr(acc(j,i)+2*g,2)}, v6, s[{sWS}:{sWS+3}], s{58+2*g+i} offen {st_flags}")
        a.label(L(f"std{j}"))
    a(f"s_branch {L('done')}")

    loop("V")
    stats()
    RSV, MRV, CSV = 144, 176, (26, 28)
    for i in range(2):
        a(f"s_and_b32 s{sT}, s{sTau[i]}, 3\ns_lshl_b32 s{sT}, s{sT}, 7\nv_lshl_add_u32 v6, v3, 5, s{sT}")
        for q in range(4):
            off = (q // 2) * 64 + (q % 2) * 16
            a(f"ds_read_b128 {vr(RSV+16*i+4*q,4)}, v6 offset:{STAT+off}\nds_read_b128 {vr(MRV+16*i+4*q,4)}, v6 offset:{STAT+512+off}")
        if i == 0: a("s_waitcnt lgkmcnt(4)")
    a(f"v_and_b32 v2, 31, v0\ns_mov_b32 s40, 3277\ns_mov_b32 s41, {KV_HEAD - 640}")
    for j in range(2):
        a(f"s_lshl_b32 s{sT}, s{sTj[j]}, 7\nv_lshl_add_u32 v7, v2, 2, s{sT}\nds_read_b32 v{CSV[j]}, v7 offset:{STAT+1024}")
        a(f"s_lshl_b32 s39, s{sCb}, 2\ns_add_u32 s39, s39, s{sTj[j]}\ns_sub_u32 s39, s39, 44\ns_lshl_b32 s39, s39, 5")
        a(f"v_add_u32 v4, s39, v2\nv_mul_u32_u24 v5, s40, v4\nv_lshrrev_b32 v5, 16, v5")
        a(f"v_mul_u32_u24 v6, 20, v5\nv_sub_u32 v6, v4, v6\nv_bfe_u32 v6, v6, 3, 1\nv_xor_b32 v6, v6, v3")
        a(f"v_lshlrev_b32 v4, 5, v4\nv_lshl_add_u32 v4, v6, 4, v4\nv_mad_u32_u24 v{30+j}, v5, s41, v4")
    for i in range(2):
        a(f"s_lshr_b32 s39, s{sTau[i]}, 3\ns_mul_i32 s39, s39, {KV_CHUNK}\ns_and_b32 s42, s{sTau[i]}, 7\ns_mul_i32 s42, s42, 1280")
        a(f"s_add_u32 s39, s39, s42\ns_add_u32 s{44+i}, s39, {WS_KV + KV_V}")
    a("s_waitcnt lgkmcnt(0)")
    for j in range(2):
        for i in range(2):
            A_ = acc(j, i)
            for r in range(0, 16, 2):
                a(f"v_pk_mul_f32 {vr(A_+r,2)}, {vr(A_+r,2)}, {vr(RSV+16*i+r,2)}")
                a(f"v_pk_fma_f32 {vr(A_+r,2)}, {vr(MRV+16*i+r,2)}, {vr(CSV[j],2)}, {vr(A_+r,2)} op_sel_hi:[1,0,1] neg_lo:[1,0,0] neg_hi:[1,0,0]")
            for r in range(8):
                a(f"v_cvt_pk_bf16_f32 v{A_+r}, v{A_+2*r}, v{A_+2*r+1}")
            a(f"buffer_store_dwordx4 {vr(A_,4)}, v{30+j}, s[{sWS}:{sWS+3}], s{44+i} offen {st_flags}")
            a(f"buffer_store_dwordx4 {vr(A_+4,4)}, v{30+j}, s[{sWS}:{sWS+3}], s{44+i} offen offset:640 {st_flags}")
    a.label(L("done"))
    stamp_end(a, stamp, L("exit"), stamp_wg)
    a.label(L("exit"))
    a("s_endpgm")
    return dict(name=name, grid=256, block=512, lds=NS * SLOT, nvgpr=208, nstamp=4)
```

```python
S, D, H, DH, DF = 2048, 640, 32, 20, 1536
WS_Q = 0
Q_HEAD = 64 * 1280
WS_KV = WS_Q + H * Q_HEAD
KV_CHUNK = 20480
KV_K2, KV_V = 8192, 10240
KV_HEAD = 8 * KV_CHUNK
WS_O = WS_KV + H * KV_HEAD
O_TILE = 32 * 1280
WS_H = WS_O + 64 * O_TILE
H_TILE = 40 * 1024
WS_ST = WS_H + 64 * H_TILE
ST_BLK = 2048 * 8
WS_FF = WS_ST + 8 * ST_BLK
FF_TILE = 96 * 1024
WS_END = WS_FF + 64 * FF_TILE
WS_BYTES = 268435456
ARG_X, ARG_WQKV, ARG_WO, ARG_WG, ARG_WU, ARG_WD, ARG_OUT, ARG_DBG, ARG_WS = 0, 8, 16, 32, 40, 48, 56, 64, 72

def main_dims(head):
    return list(range(16)) if head % 2 == 0 else list(range(4, 20))

def rem_dims(head):
    return list(range(16, 20)) if head % 2 == 0 else list(range(4))
```

```python
import sys, functools
sys.path.insert(0, "tools")
from build import *
from k_qkv import gen_qkv
from k_attn import gen_attn
from k_proj import gen_proj
from k_gate import gen_gate
def gens(stamp=False, **kw):
    P = functools.partial
    return [P(gen_qkv, stamp=stamp, **kw.get('qkv', {})), P(gen_attn, stamp=stamp, **kw.get('attn', {})), P(gen_proj, mode="wo", stamp=stamp, **kw.get('wo', {})),
            P(gen_gate, stamp=stamp, **kw.get('gate', {})), P(gen_proj, mode="down", stamp=stamp, **kw.get('down', {}))]
if __name__ == "__main__":
    from localcheck import localcheck
    t, i = assemble_file(gens())
    localcheck(t, "all")
    open("sequential_preLN__mha_block__glu_gated_geglu__prompt.s", "w").write(t)
    print(len(t), "bytes")
```

```python
import sys
sys.path.insert(0, "tools")
from gen_all import *
from localcheck import localcheck
def gen_empty(a, name="empty_kernel", grid=256, block=64, lds=0):
    if name not in gen_empty.done:
        a(f".p2align 8\n.type {name},@function\n{name}:\ns_endpgm")
        gen_empty.done.add(name)
    return dict(name=name, grid=grid, block=block, lds=lds, nvgpr=8)
def dup(info_holder):
    return lambda a: dict(info_holder[0])
def build(tag, order):
    gen_empty.done = set()
    g = gens(); cache = {}
    def mk(ch):
        def f(a):
            if ch == 'e': return gen_empty(a)
            if ch not in cache: cache[ch] = g[int(ch)](a)
            return cache[ch]
        return f
    t, i = assemble_file([mk(c) for c in order])
    localcheck(t, tag)
    open(f"variants/{tag}.s", "w").write(t)
import os; os.makedirs("variants", exist_ok=True)
build("base", "01234")
build("e5end", "01234eeeee")
build("e5start", "eeeee01234")
build("dup_attn", "011234")
build("dup_qkv", "001234")
build("dup_down", "012344")
```

```python
from asmlib import *
from layout import *

SC = KV_CHUNK
ONES_BYTES = 10240

def srd(a, d, base, size, off=None):
    if off is None:
        a(f"s_mov_b32 s{d}, s{base}")
        a(f"s_and_b32 s{d+1}, s{base+1}, 0xffff")
    else:
        a(f"s_add_u32 s{d}, s{base}, {off}")
        a(f"s_addc_u32 s{d+1}, s{base+1}, 0")
        a(f"s_and_b32 s{d+1}, s{d+1}, 0xffff")
    a(f"s_mov_b32 s{d+2}, {size}")
    a(f"s_mov_b32 s{d+3}, 0x20000")

def gen_attn(a, name="attn_kernel", NS=4, stamp=False, order=3, prio=0, allbar=False, only=None, abl=(), pf=0):
    O, NEGM, SB_ = 16, 32, (48, 64, 112, 128)
    Q1, Q2 = 80, (84, 86)
    K1, K2 = 88, 92
    V = ((96, 100), (104, 108))
    vL16, vK1, vK2, vV, vVoff, vIDX, vT, vMask, vL8 = 1, 2, 3, 4, 5, 6, 7, 8, 9
    sW, sHead, sI, sSlot, sKV, sTmp, sQ, sSrc, sRd = 20, 21, 22, 23, 25, 27, 28, 29, 35
    sIdx = (30, 31, 32)
    WS = 8
    I1 = 9 - NS
    ONES = NS * SC
    L = lambda s: f"{name}_{s}"

    def qk1(dst, c): a(f"v_mfma_f32_32x32x16_bf16 {vr(dst,16)}, {vr(K1,4)}, {vr(Q1,4)}, {c}")
    def qk2(dst, par): a(f"v_mfma_f32_32x32x8bf16_1k {vr(dst,16)}, {vr(K2,2)}, {vr(Q2[par],2)}, {vr(dst,16)}")
    def pv(vf, p): a(f"v_smfmac_f32_32x32x32_bf16 {vr(O,16)}, {vr(vf,4)}, {vr(p,8)}, v{vIDX}")
    def rdK1(n):
      if 'noK' not in abl: a(f"ds_read_b128 {vr(K1,4)}, v{vK1} offset:{n * 1024}")
    def rdK2(n):
      if 'noK' not in abl: a(f"ds_read_b64 {vr(K2,2)}, v{vK2} offset:{KV_K2 + n * 256}")
    def rdV(n, g):
      if 'noV' not in abl: a(f"ds_read_b128 {vr(V[n % 2][g], 4)}, v{vV} offset:{(n * 2 + g) * 640}")

    def dma(src, slot):
        for j in range(3):
            a(f"s_add_u32 m0, s{slot}, s{sIdx[j]}")
            a(f"s_add_u32 s{sTmp}, s{src}, s{sIdx[j]}")
            a(f"buffer_load_dwordx4 v{vL16}, s[{WS}:{WS+3}], s{sTmp} offen lds")

    def prefetch():
        a(f"s_load_dwordx2 s[60:61], s[0:1], {ARG_WO}\ns_load_dwordx4 s[64:67], s[0:1], {ARG_WG}\ns_load_dwordx2 s[62:63], s[0:1], {ARG_WD}")
        if pf == 1:
            a(f"s_lshr_b32 s56, s2, 3\ns_lshl_b32 s56, s56, 3\ns_add_u32 s56, s56, s{sW}\ns_and_b32 s57, s2, 1")
            a(f"v_mul_u32_u24 v10, 1639, v0\nv_lshrrev_b32 v10, 16, v10\nv_mul_u32_u24 v11, 640, v10\nv_lshl_add_u32 v10, v0, 4, v11")
            a(f"v_lshrrev_b32 v11, 5, v0\nv_mul_u32_u24 v11, 2560, v11\nv_lshl_add_u32 v11, v0, 4, v11")
        a("s_waitcnt lgkmcnt(0)")
        r = 144
        for base, rows, kind in ((60, D, 0), (64, D, 1), (66, D, 1), (62, DF, 0)):
            size = rows * (D if kind == 0 else DF) * 2
            srd(a, 12, base, size)
            if pf == 2:
                per = size // 2048
                a(f"s_lshl_b32 s58, s2, 3\ns_add_u32 s58, s58, s{sW}\ns_mul_i32 s58, s58, {per}")
                a(f"buffer_load_dwordx4 {vr(r,4)}, v{vL16}, s[12:15], s58 offen"); r += 4
            elif kind == 0:
                nrow = rows * 1.0 / 256
                a(f"s_mul_i32 s58, s56, {int(nrow*2)*640}\ns_and_b32 s58, s58, 0xffffffff\ns_mul_i32 s59, s57, 640")
                a(f"s_mul_i32 s58, s56, {int(nrow*2)}\ns_add_u32 s58, s58, 1\ns_lshr_b32 s58, s58, 1\ns_mul_i32 s58, s58, 1280\ns_add_u32 s58, s58, s59")
                for k in range(2 if rows == D else 4):
                    a(f"buffer_load_dwordx4 {vr(r,4)}, v10, s[12:15], s58 offen"); r += 4
                    a(f"s_add_u32 s58, s58, {1280 if rows == D and k == 0 else 1280 + (1280 if k % 2 else 0)}")
            else:
                a(f"s_mul_i32 s58, s56, 5\ns_lshr_b32 s58, s58, 1\ns_mul_i32 s58, s58, 3072\ns_mul_i32 s59, s57, 1536\ns_add_u32 s58, s58, s59")
                for k in range(2):
                    for c in range(3):
                        a(f"buffer_load_dwordx4 {vr(r,4)}, v11, s[12:15], s58 offen offset:{c*512}"); r = 144 + (r - 144 + 4) % 64
                    a(f"s_add_u32 s58, s58, {3072}")

    a(f".p2align 8\n.type {name},@function\n{name}:")
    a(f"s_cmp_ge_u32 s2, 256\ns_cbranch_scc1 {L('exit')}")
    if only is not None:
        a(f"s_cmp_lg_u32 s2, {only}\ns_cbranch_scc1 {L('exit')}")
    a(f"s_load_dwordx2 s[4:5], s[0:1], {ARG_WS}")
    from k_qkv import stamp_begin, stamp_at, stamp_end
    stamp_begin(a, stamp)
    a(f"v_lshrrev_b32 v{vT}, 6, v0")
    a(f"v_lshlrev_b32 v15, 4, v0")
    a(f"v_and_b32 v0, 63, v0")
    a(f"v_readfirstlane_b32 s{sW}, v{vT}")
    a(f"v_lshlrev_b32 v{vL16}, 4, v0")
    a(f"s_and_b32 s{sHead}, s2, 7\ns_lshl_b32 s{sHead}, s{sHead}, 2\ns_bfe_u32 s{sTmp}, s2, 0x20003\ns_add_u32 s{sHead}, s{sHead}, s{sTmp}")
    a(f"s_mul_i32 s{sKV}, s{sHead}, {KV_HEAD}\ns_add_u32 s{sKV}, s{sKV}, {WS_KV}")
    a(f"s_lshl_b32 s{sIdx[0]}, s{sW}, 10\ns_add_u32 s{sIdx[1]}, s{sIdx[0]}, 0x2000\ns_add_u32 s{sIdx[2]}, s{sIdx[0]}, 0x4000\ns_min_u32 s{sIdx[2]}, s{sIdx[2]}, {19*1024}")
    a(f"s_lshr_b32 s{sQ}, s2, 5\ns_lshl_b32 s{sQ}, s{sQ}, 3\ns_add_u32 s{sQ}, s{sQ}, s{sW}")
    a(f"s_mul_i32 s33, s{sHead}, {Q_HEAD}\ns_mul_i32 s34, s{sQ}, 1280\ns_add_u32 s33, s33, s34")
    a(f"v_and_b32 v{vT}, 31, v0\nv_lshlrev_b32 v{vL8}, 3, v{vT}")
    a("s_waitcnt lgkmcnt(0)")
    srd(a, WS, 4, WS_END)
    a(f"s_mov_b32 s{sSrc}, s{sKV}\ns_mov_b32 s{sSlot}, 0")
    dma(sSrc, sSlot)
    a(f"buffer_load_dwordx4 {vr(Q1,4)}, v{vL16}, s[{WS}:{WS+3}], s33 offen")
    a(f"buffer_load_dwordx2 {vr(Q2[0],2)}, v{vL8}, s[{WS}:{WS+3}], s33 offen offset:1024")
    for j in range(1, NS - 1):
        a(f"s_add_u32 s{sSrc}, s{sSrc}, {SC}\ns_add_u32 s{sSlot}, s{sSlot}, {SC}")
        dma(sSrc, sSlot)
    a(f"s_add_u32 s{sSrc}, s{sSrc}, {SC}\ns_add_u32 s{sSlot}, s{sSlot}, {SC}")
    for r in range(4): a(f"v_mov_b32 v{16+r}, 0x3f803f80")
    a(f"v_add_u32 v15, {ONES}, v15\nv_min_u32 v14, {ONES + ONES_BYTES - 8192 - 16}, v15")
    a(f"ds_write_b128 v15, v[16:19]\nds_write_b128 v14, v[16:19] offset:8192")
    a(f"v_mov_b32 v{vK1}, v{vL16}")
    a(f"v_lshlrev_b32 v{vK2}, 3, v0")
    a(f"v_lshrrev_b32 v11, 5, v0")
    a(f"v_bfe_u32 v12, v0, 2, 1\nv_bfe_u32 v13, v0, 3, 1")
    a(f"v_and_b32 v10, 0x13, v0\nv_lshl_or_b32 v10, v12, 3, v10\nv_lshl_or_b32 v10, v13, 2, v10")
    a(f"v_xor_b32 v12, v11, v12")
    a(f"v_lshlrev_b32 v10, 5, v10\nv_lshl_add_u32 v10, v12, 4, v10\nv_add_u32 v10, {KV_V}, v10")
    a(f"v_cmp_le_u32 vcc, 28, v{vT}\nv_xor_b32 v11, 1, v11\nv_lshlrev_b32 v11, 4, v11")
    a(f"v_cndmask_b32 v12, 0, 1, vcc\nv_lshl_add_u32 v11, v12, 7, v11\nv_add_u32 v11, {ONES}, v11")
    a(f"v_cmp_gt_u32 vcc, 20, v{vT}\nv_mov_b32 v{vIDX}, 0xdddddddd\ns_nop 0")
    a(f"v_cndmask_b32 v{vVoff}, v11, v10, vcc\nv_cndmask_b32 v{vMask}, 0, 1, vcc\nv_mov_b32 v{vV}, v{vVoff}")
    for r in range(16):
        a(f"v_mov_b32 v{O+r}, 0")
    for r in range(8, 16):
        a(f"v_mov_b32 v{SB_[3]+r}, 0")
    a(f"v_cmp_gt_u32 vcc, 32, v0")
    for r in range(4):
        a(f"v_mov_b32 v{V[1][1]+r}, 0")
    a(f"s_waitcnt vmcnt({3*(NS-2)}) lgkmcnt(0)")
    a(f"v_cndmask_b32 v{Q2[1]}, v{Q2[0]}, 0, vcc\nv_cndmask_b32 v{Q2[1]+1}, v{Q2[0]+1}, 0, vcc")
    a(f"v_cndmask_b32 v{Q2[0]}, 0, v{Q2[0]}, vcc\nv_cndmask_b32 v{Q2[0]+1}, 0, v{Q2[0]+1}, vcc")
    a("s_barrier")
    rdK1(0); rdK2(0); rdV(0, 0); rdV(0, 1)
    a("s_waitcnt lgkmcnt(2)")
    A_ = SB_[0]
    qk1(A_, "0"); qk2(A_, 0)
    a("s_nop 11")
    a(f"v_max3_f32 v10, v{A_}, v{A_+1}, v{A_+2}")
    for r in range(3, 15, 2):
        a(f"v_max3_f32 v10, v10, v{A_+r}, v{A_+r+1}")
    a(f"v_max_f32 v10, v10, v{A_+15}\nv_mov_b32 v11, v10\ns_nop 1\nv_permlane32_swap_b32 v10, v11")
    a(f"v_max_f32 v10, v10, v11")
    for r in range(16):
        a(f"v_sub_f32 v{NEGM+r}, 0, v10")
    a("s_nop 1")
    qk1(A_, vr(NEGM, 16))
    rdK1(1)
    qk2(A_, 0)
    a("s_waitcnt lgkmcnt(0)")
    qk1(SB_[1], vr(NEGM, 16))
    rdK1(2)
    qk2(SB_[1], 1)
    rdK2(2)
    a(f"s_mov_b32 s{sI}, 0\ns_mov_b32 s{sRd}, 0")
    if prio:
        a(f"s_cmp_ge_u32 s{sW}, 4\ns_cbranch_scc0 {L('noprio')}\ns_setprio 1")
        a.label(L("noprio"))
    if 'linV' in abl: a(f"v_mov_b32 v{vVoff}, v{vL16}\nv_mov_b32 v{vV}, v{vL16}")
    stamp_at(a, stamp, 0)
    a("s_nop 8")
    a(".p2align 6" if 'al64' in abl else ".p2align 3")
    if 'shift4' in abl: a("s_nop 0")
    a.label(L("loop"))
    for n in range(8):
        A_, B_, P_ = SB_[n % 4], SB_[(n + 2) % 4], SB_[(n + 3) % 4]
        e = lambda *rs: [a(f"v_exp_f32 v{A_+r}, v{A_+r}") for r in rs]
        nv, nk = (n + 1) % 8, (n + 3) % 8
        def sync():
            if 'nosync' in abl: return
            a(f"s_cmp_ge_u32 s{sI}, {I1}\ns_cbranch_scc1 {L('lastbar')}")
            a(f"s_waitcnt vmcnt({3*(NS-3)})\ns_barrier")
            dma(sSrc, sSlot)
            a(f"s_add_u32 s{sSrc}, s{sSrc}, {SC}\ns_add_u32 s{sSlot}, s{sSlot}, {SC}")
            a(f"s_cmp_eq_u32 s{sSlot}, {NS*SC}\ns_cselect_b32 s{sSlot}, 0, s{sSlot}")
            a(f"s_branch {L('nobar')}")
            a.label(L("lastbar"))
            if not allbar:
                a(f"s_cmp_gt_u32 s{sI}, {I1}\ns_cbranch_scc1 {L('nobar')}")
            a("s_waitcnt vmcnt(0)\ns_barrier")
            if pf: prefetch()
            a.label(L("nobar"))
            a(f"s_add_u32 s{sRd}, s{sRd}, {SC}\ns_cmp_eq_u32 s{sRd}, {NS*SC}\ns_cselect_b32 s{sRd}, 0, s{sRd}")
            a(f"v_add_u32 v{vK1}, s{sRd}, v{vL16}\nv_lshl_add_u32 v{vK2}, v0, 3, s{sRd}")
        advV = lambda: a(f"v_mad_u32_u24 v{vV}, v{vMask}, s{sRd}, v{vVoff}")
        if order == 3:
            e(0, 1)
            a("s_waitcnt lgkmcnt(0)")
            pv(V[(n + 1) % 2][1], P_ + 8)
            if n == 7: advV()
            rdV(nv, 0)
            e(2, 3, 4, 5)
            qk1(B_, vr(NEGM, 16))
            if n == 5: sync()
            rdK1(nk)
            e(6, 7, 8, 9)
            qk2(B_, n % 2)
            rdV(nv, 1)
            if n % 2 == 1: rdK2(nk)
            e(10, 11, 12, 13)
            pv(V[n % 2][0], A_)
            e(14, 15)
        elif order == 4:
            e(0, 1)
            pv(V[(n + 1) % 2][1], P_ + 8)
            e(2, 3, 4, 5)
            a("s_waitcnt lgkmcnt(0)")
            qk1(B_, vr(NEGM, 16))
            e(6, 7, 8, 9)
            qk2(B_, n % 2)
            if n == 5: sync()
            if n == 7: advV()
            rdK1(nk); rdV(nv, 0); rdV(nv, 1)
            if n % 2 == 1: rdK2(nk)
            e(10, 11, 12, 13)
            pv(V[n % 2][0], A_)
            e(14, 15)
        elif order == 5:
            e(0, 1)
            pv(V[(n + 1) % 2][1], P_ + 8)
            if n == 7: advV()
            rdV(nv, 1)
            e(2, 3, 4, 5)
            a("s_waitcnt lgkmcnt(1)")
            qk1(B_, vr(NEGM, 16))
            if n == 5: sync()
            rdK1(nk)
            e(6, 7, 8, 9)
            qk2(B_, n % 2)
            if n % 2 == 1: rdK2(nk)
            e(10, 11, 12, 13)
            pv(V[n % 2][0], A_)
            rdV(nv, 0)
            e(14, 15)
    a(f"s_add_u32 s{sI}, s{sI}, 1\ns_cmp_lt_u32 s{sI}, 8\ns_cbranch_scc1 {L('loop')}")
    pv(V[1][1], SB_[3] + 8)
    stamp_at(a, stamp, 1)
    a(f"s_mul_i32 s33, s{sQ}, {O_TILE}\ns_mul_i32 s34, s{sHead}, 1280\ns_add_u32 s33, s33, s34\ns_add_u32 s33, s33, {WS_O}")
    a("s_mov_b32 s36, 0x53800000")
    a("s_nop 6")
    a(f"v_mul_f32 v10, 0, v{O}")
    for r in range(1, 12):
        a(f"v_fma_f32 v10, v{O+r}, 0, v10")
    a(f"v_add_f32 v10, v10, v{O+12}")
    a(f"v_cmp_nge_f32 vcc, s36, v10\ns_nop 1\ns_cbranch_vccnz {L('slow')}")
    a.label(L("finish"))
    a(f"v_rcp_f32 v10, v{O+12}\ns_nop 0")
    for r in range(12):
        a(f"v_mul_f32 v{O+r}, v{O+r}, v10")
    for r in range(6):
        a(f"v_cvt_pk_bf16_f32 v{O+r}, v{O+2*r}, v{O+2*r+1}")
    a(f"buffer_store_dwordx4 {vr(O,4)}, v{vL16}, s[{WS}:{WS+3}], s33 offen")
    a("s_mov_b64 exec, 0xffffffff")
    a(f"buffer_store_dwordx2 {vr(O+4,2)}, v{vL8}, s[{WS}:{WS+3}], s33 offen offset:1024")
    if stamp: a("s_mov_b64 exec, -1")
    stamp_end(a, stamp, L("exit"))
    a.label(L("exit"))
    a("s_endpgm")

    a.label(L("slow"))
    A_ = SB_[0]
    a(f"v_cmp_ne_u32 s[52:53], 0, v{vMask}\nv_mov_b32 v15, 0xff7fffff\nv_mov_b32 v14, 0x3f803f80")
    a(f"v_cndmask_b32 v{vV}, 0, v{vVoff}, s[52:53]")
    a("s_mov_b32 s37, 0")
    a.label(L("slow_pass"))
    a(f"s_mov_b32 s{sI}, 0")
    a.label(L("slow_tile"))
    a(f"s_lshr_b32 s38, s{sI}, 3\ns_mul_i32 s38, s38, {KV_CHUNK}\ns_add_u32 s38, s38, s{sKV}\ns_and_b32 s39, s{sI}, 7")
    a(f"s_lshl_b32 s48, s39, 10\ns_add_u32 s48, s48, s38")
    a(f"s_lshl_b32 s49, s39, 8\ns_add_u32 s49, s49, s38\ns_add_u32 s49, s49, {KV_K2}")
    a(f"s_mul_i32 s50, s39, 1280\ns_add_u32 s50, s50, s38")
    a(f"buffer_load_dwordx4 {vr(K1,4)}, v{vL16}, s[{WS}:{WS+3}], s48 offen")
    a(f"buffer_load_dwordx2 {vr(K2,2)}, v{vL8}, s[{WS}:{WS+3}], s49 offen")
    a(f"s_cmp_eq_u32 s37, 0\ns_cbranch_scc0 {L('slow_pv')}")
    a("s_waitcnt vmcnt(0)")
    qk1(A_, "0"); qk2(A_, 0)
    a("s_nop 11")
    for r in range(0, 16, 2):
        a(f"v_max3_f32 v15, v15, v{A_+r}, v{A_+r+1}")
    a(f"s_branch {L('slow_next')}")
    a.label(L("slow_pv"))
    for g in range(2):
        a(f"buffer_load_dwordx4 {vr(V[0][g],4)}, v{vV}, s[{WS}:{WS+3}], s50 offen offset:{g*640}")
    a("s_waitcnt vmcnt(0)")
    qk1(A_, vr(NEGM, 16)); qk2(A_, 0)
    for g in range(2):
        for r in range(4):
            a(f"v_cndmask_b32 v{V[0][g]+r}, v14, v{V[0][g]+r}, s[52:53]")
    a("s_nop 3")
    for r in range(16):
        a(f"v_exp_f32 v{A_+r}, v{A_+r}")
    a("s_nop 1")
    pv(V[0][0], A_); pv(V[0][1], A_ + 8)
    a("s_nop 3")
    a.label(L("slow_next"))
    a(f"s_add_u32 s{sI}, s{sI}, 1\ns_cmp_lt_u32 s{sI}, 64\ns_cbranch_scc1 {L('slow_tile')}")
    a(f"s_cmp_eq_u32 s37, 0\ns_cbranch_scc0 {L('slow_done')}")
    a(f"v_mov_b32 v11, v15\ns_nop 1\nv_permlane32_swap_b32 v15, v11\nv_max_f32 v15, v15, v11")
    for r in range(16):
        a(f"v_sub_f32 v{NEGM+r}, 0, v15\nv_mov_b32 v{O+r}, 0")
    a(f"s_mov_b32 s37, 1\ns_branch {L('slow_pass')}")
    a.label(L("slow_done"))
    a(f"s_nop 11\ns_branch {L('finish')}")
    return dict(name=name, grid=256, block=512, lds=NS * SC + ONES_BYTES, nvgpr=216 if pf else 144)
```

```python
from asmlib import *
from layout import *
from k_attn import srd
from k_qkv import stamp_begin, stamp_at, stamp_end

SC = KV_CHUNK

class Attn:
    O, NEGM, SB = 16, 32, (48, 64, 112, 128)
    Q1, Q2, K1, K2 = 80, (84, 86), 88, 92
    V = ((96, 100), (104, 108))
    vL16, vK1, vK2, vV, vIDX, vL8 = 1, 2, 3, 4, 6, 9
    sW, sHead, sI, sKV, sTmp, sQ, sSrc, sDst, sMaskV = 20, 21, 22, 25, 27, 28, 29, 30, 34
    WS = 8

    def __init__(self, a, name, stamp, order, swap_at, pf, st_flags, abl, nld, bar_at, park):
        self.__dict__.update(locals())
        self.L = lambda s: f"{name}_{s}"

    def qk1(s, dst, c): s.a(f"v_mfma_f32_32x32x16_bf16 {vr(dst,16)}, {vr(s.K1,4)}, {vr(s.Q1,4)}, {c}")
    def qk2(s, dst, par): s.a(f"v_mfma_f32_32x32x8bf16_1k {vr(dst,16)}, {vr(s.K2,2)}, {vr(s.Q2[par],2)}, {vr(dst,16)}")
    def pv(s, vf, p): s.a(f"v_smfmac_f32_32x32x32_bf16 {vr(s.O,16)}, {vr(vf,4)}, {vr(p,8)}, v{s.vIDX}")
    def rdK1(s, n): s.a(f"ds_read_b128 {vr(s.K1,4)}, v{s.vK1} offset:{(n // 8) * SC + (n % 8) * 1024}")
    def rdK2(s, n): s.a(f"ds_read_b64 {vr(s.K2,2)}, v{s.vK2} offset:{(n // 8) * SC + KV_K2 + (n % 8) * 256}")
    def rdV(s, n):
        s.a(f"s_mov_b64 exec, s[{s.sMaskV}:{s.sMaskV+1}]")
        for g in range(2):
            s.a(f"ds_read_b128 {vr(s.V[n % 2][g], 4)}, v{s.vV} offset:{(n // 8) * SC + ((n % 8) * 2 + g) * 640}")
        s.a("s_mov_b64 exec, -1")

    def dma5(s, cnt=5):
        a = s.a
        for j in range(cnt):
            a(f"s_mov_b32 m0, s{s.sDst}\ns_add_u32 s{s.sDst}, s{s.sDst}, 8192")
            a(f"buffer_load_dwordx4 v{s.vL16}, s[{s.WS}:{s.WS+3}], s{s.sSrc} offen lds")
            a(f"s_add_u32 s{s.sSrc}, s{s.sSrc}, 8192")

    def prefetch(s):
        a = s.a
        for r, (base, size) in enumerate(((60, D * D * 2), (64, D * DF * 2), (66, D * DF * 2), (62, D * DF * 2))):
            srd(a, 12, base, size)
            a(f"s_mul_i32 s59, s58, {size // 2048}")
            a(f"buffer_load_dwordx4 {vr(112 + 4 * r, 4)}, v{s.vL16}, s[12:15], s59 offen")

    def prologue(s):
        a, L = s.a, s.L
        a(f"v_lshrrev_b32 v7, 6, v0\nv_and_b32 v0, 63, v0\nv_readfirstlane_b32 s{s.sW}, v7\nv_lshlrev_b32 v{s.vL16}, 4, v0")
        a(f"s_and_b32 s{s.sHead}, s2, 7\ns_lshl_b32 s{s.sHead}, s{s.sHead}, 2\ns_bfe_u32 s{s.sTmp}, s2, 0x20003\ns_add_u32 s{s.sHead}, s{s.sHead}, s{s.sTmp}")
        a(f"s_mul_i32 s{s.sKV}, s{s.sHead}, {KV_HEAD}\ns_add_u32 s{s.sKV}, s{s.sKV}, {WS_KV}")
        a(f"s_cmp_ge_u32 s{s.sW}, 8\ns_cbranch_scc1 {L('loader')}")
        a(f"s_lshr_b32 s{s.sQ}, s2, 5\ns_lshl_b32 s{s.sQ}, s{s.sQ}, 3\ns_add_u32 s{s.sQ}, s{s.sQ}, s{s.sW}")
        a(f"s_mul_i32 s33, s{s.sHead}, {Q_HEAD}\ns_mul_i32 s32, s{s.sQ}, 1280\ns_add_u32 s33, s33, s32")
        a(f"v_and_b32 v7, 31, v0\nv_lshlrev_b32 v{s.vL8}, 3, v7")
        a("s_waitcnt lgkmcnt(0)")
        srd(a, s.WS, 4, WS_END)
        a(f"buffer_load_dwordx4 {vr(s.Q1,4)}, v{s.vL16}, s[{s.WS}:{s.WS+3}], s33 offen")
        a(f"buffer_load_dwordx2 {vr(s.Q2[0],2)}, v{s.vL8}, s[{s.WS}:{s.WS+3}], s33 offen offset:1024")
        a(f"buffer_load_dwordx4 {vr(s.K1,4)}, v{s.vL16}, s[{s.WS}:{s.WS+3}], s{s.sKV} offen")
        a(f"s_add_u32 s32, s{s.sKV}, {KV_K2}\nv_lshlrev_b32 v{s.vK2}, 3, v0")
        a(f"buffer_load_dwordx2 {vr(s.K2,2)}, v{s.vK2}, s[{s.WS}:{s.WS+3}], s32 offen")
        a(f"v_mov_b32 v{s.vK1}, v{s.vL16}")
        a(f"v_lshrrev_b32 v11, 5, v0\nv_bfe_u32 v12, v0, 2, 1\nv_bfe_u32 v13, v0, 3, 1")
        a(f"v_and_b32 v10, 0x13, v0\nv_lshl_or_b32 v10, v12, 3, v10\nv_lshl_or_b32 v10, v13, 2, v10\nv_xor_b32 v12, v11, v12")
        a(f"v_lshlrev_b32 v10, 5, v10\nv_lshl_add_u32 v10, v12, 4, v10\nv_add_u32 v{s.vV}, {KV_V}, v10")
        a(f"s_mov_b32 s{s.sMaskV}, 0xfffff\ns_mov_b32 s{s.sMaskV+1}, 0xfffff\ns_mov_b32 s36, 0x1100000\ns_mov_b32 s37, 0x1100000")
        a(f"v_mov_b32 v{s.vIDX}, 0xdddddddd\nv_mov_b32 v10, 0x3f803f80\nv_cndmask_b32 v10, 0, v10, s[36:37]")
        for b in (96, 100, 104, 108):
            for r in range(4): a(f"v_mov_b32 v{b+r}, v10")
        for r in range(16): a(f"v_mov_b32 v{s.O+r}, 0")
        a("v_cmp_gt_u32 vcc, 32, v0")
        for r in range(8, 16): a(f"v_mov_b32 v{s.SB[3]+r}, 0")
        a("s_waitcnt vmcnt(0)")
        Q2 = s.Q2
        a(f"v_cndmask_b32 v{Q2[1]}, v{Q2[0]}, 0, vcc\nv_cndmask_b32 v{Q2[1]+1}, v{Q2[0]+1}, 0, vcc")
        a(f"v_cndmask_b32 v{Q2[0]}, 0, v{Q2[0]}, vcc\nv_cndmask_b32 v{Q2[0]+1}, 0, v{Q2[0]+1}, vcc\ns_nop 0")
        A_ = s.SB[0]
        s.qk1(A_, "0"); s.qk2(A_, 0)
        a("s_nop 11")
        a(f"v_max3_f32 v10, v{A_}, v{A_+1}, v{A_+2}\nv_max3_f32 v11, v{A_+3}, v{A_+4}, v{A_+5}")
        for r in range(6, 14, 4):
            a(f"v_max3_f32 v10, v10, v{A_+r}, v{A_+r+1}\nv_max3_f32 v11, v11, v{A_+r+2}, v{A_+r+3}")
        a(f"v_max3_f32 v10, v10, v{A_+14}, v{A_+15}\nv_max_f32 v10, v10, v11\nv_mov_b32 v11, v10\ns_nop 1\nv_permlane32_swap_b32 v10, v11")
        a("v_max_f32 v10, v10, v11")
        for r in range(16): a(f"v_sub_f32 v{s.NEGM+r}, 0, v10")
        for r in range(16): a(f"v_sub_f32 v{A_+r}, v{A_+r}, v10")
        a("s_barrier")
        s.rdK1(1); s.rdV(0)
        a("s_waitcnt lgkmcnt(2)")
        s.qk1(s.SB[1], vr(s.NEGM, 16)); s.rdK1(2)
        s.qk2(s.SB[1], 1); s.rdK2(2)
        a(f"s_mov_b32 s{s.sI}, 0")
        if s.swap_at is not None:
            a(f"s_cmp_lt_u32 s{s.sW}, 4\ns_cselect_b32 s38, 0, {s.swap_at}\ns_lshl_b32 s39, s38, 1\ns_xor_b32 s39, s39, s38\ns_bitcmp0_b32 s38, 0\ns_cbranch_scc1 {L('prio')}\ns_setprio 1")
            a.label(L("prio"))

    def loop(s):
        a, L, V = s.a, s.L, s.V
        a(".p2align 3")
        a.label(L("loop"))
        for n in range(8):
            A_, B_, P_ = s.SB[n % 4], s.SB[(n + 2) % 4], s.SB[(n + 3) % 4]
            e = lambda *rs: [a(f"v_exp_f32 v{A_+r}, v{A_+r}") for r in rs]
            e(0, 1)
            s.pv(V[(n + 1) % 2][1], P_ + 8)
            if s.order == 0: s.rdV(n + 1)
            e(2, 3, 4, 5)
            a("s_waitcnt lgkmcnt(2)" if s.order == 0 else "s_waitcnt lgkmcnt(0)")
            s.qk1(B_, vr(s.NEGM, 16))
            if n == s.bar_at[1] and 'nobar' not in s.abl:
                a(f"s_bitcmp1_b32 {(1 << s.bar_at[0]) | getattr(s, 'bar_extra', 0)}, s{s.sI}\ns_cbranch_scc1 {L('bar')}")
                a.label(L("barback"))
            s.rdK1(n + 3)
            e(6, 7, 8, 9)
            s.qk2(B_, n % 2)
            if n % 2 == 1: s.rdK2(n + 3)
            if s.order == 1: s.rdV(n + 1)
            e(10, 11, 12, 13)
            s.pv(V[n % 2][0], A_)
            if n == 7:
                for r in (s.vK1, s.vK2, s.vV): a(f"v_add_u32 v{r}, {SC}, v{r}")
            e(14, 15)
        a(f"s_add_u32 s{s.sI}, s{s.sI}, 1")
        if s.swap_at is not None:
            a(f"s_bitcmp1_b32 s39, s{s.sI}\ns_cbranch_scc1 {L('flip')}")
            a.label(L("flipback"))
        a(f"s_cmp_eq_u32 s{s.sI}, 8\ns_cbranch_scc0 {L('loop')}")
        s.pv(V[1][1], s.SB[3] + 8)

    def rare(s):
        a, L = s.a, s.L
        if 'nobar' not in s.abl:
            a.label(L("bar"))
            a(f"s_barrier\ns_branch {L('barback')}")
        a.label(L("loader"))
        a(f"s_sub_u32 s{s.sW}, s{s.sW}, 8\ns_lshl_b32 s{s.sDst}, s{s.sW}, 10\ns_add_u32 s{s.sSrc}, s{s.sKV}, s{s.sDst}")
        if hasattr(s, "loader_setup"): s.loader_setup()
        a("s_waitcnt lgkmcnt(0)")
        srd(a, s.WS, 4, WS_END)
        per = 160 // s.nld
        first = (20 if s.bar_at < (0, 6) else 40) // s.nld
        def piece():
            a(f"s_mov_b32 m0, s{s.sDst}\ns_add_u32 s{s.sDst}, s{s.sDst}, {1024 * s.nld}")
            a(f"buffer_load_dwordx4 v{s.vL16}, s[{s.WS}:{s.WS+3}], s{s.sSrc} offen lds")
            a(f"s_add_u32 s{s.sSrc}, s{s.sSrc}, {1024 * s.nld}")
        a(f"s_mov_b32 s{s.sI}, {first}")
        a.label(L("ld0"))
        piece()
        a(f"s_sub_u32 s{s.sI}, s{s.sI}, 1\ns_cmp_lg_u32 s{s.sI}, 0\ns_cbranch_scc1 {L('ld0')}")
        for k in range(4): piece()
        a(f"s_waitcnt vmcnt(4)\ns_barrier\ns_mov_b32 s{s.sI}, {per - first - 4}")
        a.label(L("ld1"))
        piece()
        a(f"s_waitcnt vmcnt(40)\ns_sub_u32 s{s.sI}, s{s.sI}, 1\ns_cmp_lg_u32 s{s.sI}, 0\ns_cbranch_scc1 {L('ld1')}")
        npf = 0
        if s.pf:
            for k in range(8 // s.nld):
                a(f"s_lshl_b32 s58, s2, 3\ns_mul_i32 s59, s{s.sW}, {8 // s.nld}\ns_add_u32 s58, s58, s59\ns_add_u32 s58, s58, {k}")
                s.prefetch(); npf += 4
        if hasattr(s, "loader_early"): npf += s.loader_early()
        if 'nobar' not in s.abl: a(f"s_waitcnt vmcnt({npf})\ns_barrier")
        if hasattr(s, "loader_tail"):
            s.loader_tail()
        else:
            if s.park: a("s_barrier")
            a("s_endpgm")
        if s.swap_at is not None:
            a.label(L("flip"))
            a(f"s_setprio 0\ns_bitcmp0_b32 s38, s{s.sI}\ns_cbranch_scc1 {L('flipback')}\ns_setprio 1\ns_branch {L('flipback')}")

    def epilogue(s):
        a, L, O = s.a, s.L, s.O
        a(f"s_mul_i32 s33, s{s.sQ}, {O_TILE}\ns_mul_i32 s32, s{s.sHead}, 1280\ns_add_u32 s33, s33, s32\ns_add_u32 s33, s33, {WS_O}")
        a("s_mov_b32 s36, 0x53800000\nv_cmp_gt_u32 s[38:39], 32, v0\ns_nop 5")
        a(f"v_cndmask_b32 v12, v{O+8}, v{O+12}, s[38:39]")
        a(f"v_mul_f32 v10, 0, v{O}\nv_mul_f32 v11, 0, v{O+1}")
        for r in range(2, 12, 2):
            a(f"v_fma_f32 v10, v{O+r}, 0, v10\nv_fma_f32 v11, v{O+r+1}, 0, v11")
        a(f"v_add_f32 v10, v10, v11\nv_add_f32 v10, v10, v12\nv_cmp_nge_f32 vcc, s36, v10\nv_rcp_f32 v10, v12\ns_cbranch_vccnz {L('slow')}")
        a.label(L("finish"))
        for r in range(0, 12, 2):
            a(f"v_pk_mul_f32 {vr(O+r,2)}, {vr(O+r,2)}, v[10:11] op_sel_hi:[1,0]")
        for r in range(6):
            a(f"v_cvt_pk_bf16_f32 v{O+r}, v{O+2*r}, v{O+2*r+1}")
        a(f"buffer_store_dwordx4 {vr(O,4)}, v{s.vL16}, s[{s.WS}:{s.WS+3}], s33 offen {s.st_flags}")
        a("s_mov_b64 exec, 0xffffffff")
        a(f"buffer_store_dwordx2 {vr(O+4,2)}, v{s.vL8}, s[{s.WS}:{s.WS+3}], s33 offen offset:1024 {s.st_flags}")
        a("s_mov_b64 exec, -1")

    def slow(s):
        a, L, V, O, WS = s.a, s.L, s.V, s.O, s.WS
        A_ = s.SB[0]
        a.label(L("slow"))
        a(f"v_subrev_u32 v{s.vV}, {8 * SC}, v{s.vV}\nv_mov_b32 v15, 0xff7fffff\ns_mov_b32 s37, 0")
        a.label(L("slow_pass"))
        a(f"s_mov_b32 s{s.sI}, 0")
        a.label(L("slow_tile"))
        a(f"s_lshr_b32 s40, s{s.sI}, 3\ns_mul_i32 s40, s40, {KV_CHUNK}\ns_add_u32 s40, s40, s{s.sKV}\ns_and_b32 s41, s{s.sI}, 7")
        a(f"s_lshl_b32 s48, s41, 10\ns_add_u32 s48, s48, s40")
        a(f"s_lshl_b32 s49, s41, 8\ns_add_u32 s49, s49, s40\ns_add_u32 s49, s49, {KV_K2}")
        a(f"s_mul_i32 s50, s41, 1280\ns_add_u32 s50, s50, s40")
        a(f"buffer_load_dwordx4 {vr(s.K1,4)}, v{s.vL16}, s[{WS}:{WS+3}], s48 offen")
        a(f"buffer_load_dwordx2 {vr(s.K2,2)}, v{s.vL8}, s[{WS}:{WS+3}], s49 offen")
        a(f"s_cmp_eq_u32 s37, 0\ns_cbranch_scc0 {L('slow_pv')}")
        a("s_waitcnt vmcnt(0)")
        s.qk1(A_, "0"); s.qk2(A_, 0)
        a("s_nop 11")
        for r in range(0, 16, 2):
            a(f"v_max3_f32 v15, v15, v{A_+r}, v{A_+r+1}")
        a(f"s_branch {L('slow_next')}")
        a.label(L("slow_pv"))
        a(f"s_mov_b64 exec, s[{s.sMaskV}:{s.sMaskV+1}]")
        for g in range(2):
            a(f"buffer_load_dwordx4 {vr(V[0][g],4)}, v{s.vV}, s[{WS}:{WS+3}], s50 offen offset:{g*640}")
        a("s_mov_b64 exec, -1\ns_waitcnt vmcnt(0)")
        s.qk1(A_, vr(s.NEGM, 16)); s.qk2(A_, 0)
        a("s_nop 11")
        for r in range(16): a(f"v_exp_f32 v{A_+r}, v{A_+r}")
        a("s_nop 1")
        s.pv(V[0][0], A_); s.pv(V[0][1], A_ + 8)
        a("s_nop 3")
        a.label(L("slow_next"))
        a(f"s_add_u32 s{s.sI}, s{s.sI}, 1\ns_cmp_lt_u32 s{s.sI}, 64\ns_cbranch_scc1 {L('slow_tile')}")
        a(f"s_cmp_eq_u32 s37, 0\ns_cbranch_scc0 {L('slow_done')}")
        a("v_mov_b32 v11, v15\ns_nop 1\nv_permlane32_swap_b32 v15, v11\nv_max_f32 v15, v15, v11")
        for r in range(16):
            a(f"v_sub_f32 v{s.NEGM+r}, 0, v15\nv_mov_b32 v{O+r}, 0")
        a(f"s_mov_b32 s37, 1\ns_branch {L('slow_pass')}")
        a.label(L("slow_done"))
        a(f"s_nop 11\nv_cndmask_b32 v12, v{O+8}, v{O+12}, s[38:39]\nv_rcp_f32 v10, v12\ns_branch {L('finish')}")


def gen_attn2(a, name="attn_kernel", stamp=False, order=0, swap_at=0xf9, pf=1, st_flags="", abl=(), nld=4, bar_at=(1, 5), park=False):
    k = Attn(a, name, stamp, order, swap_at, pf, st_flags, abl, nld, bar_at, park)
    L = k.L
    a(f".p2align 8\n.type {name},@function\n{name}:")
    a(f"s_cmp_ge_u32 s2, 256\ns_cbranch_scc1 {L('exit')}")
    a(f"s_load_dwordx2 s[4:5], s[0:1], {ARG_WS}")
    if pf:
        a(f"s_load_dwordx2 s[60:61], s[0:1], {ARG_WO}\ns_load_dwordx4 s[64:67], s[0:1], {ARG_WG}\ns_load_dwordx2 s[62:63], s[0:1], {ARG_WD}")
    stamp_begin(a, stamp)
    k.prologue()
    stamp_at(a, stamp, 0)
    k.loop()
    stamp_at(a, stamp, 1)
    if park: a("s_barrier")
    k.epilogue()
    stamp_end(a, stamp, L("exit"))
    a.label(L("exit"))
    a("s_endpgm")
    k.rare()
    k.slow()
    return dict(name=name, grid=256, block=512 + 64 * nld, lds=8 * SC, nvgpr=144, nstamp=8)
```

```python
import math
from asmlib import *
from layout import *
from k_attn import srd
from k_attn2 import Attn, SC
from k_qkv import f2u, OOB, swap23, tr_lane_addr, lds_transpose

WS = 8
sW, sRb64, sCb8, sRb256, sCb32, sTg, sKh = 20, 72, 73, 74, 75, 76, 77
sRot4, sRot5, sGrp = 56, 57, 58
pWO, pWD, pWG, pWU, pX, pOUT = 60, 62, 64, 66, 68, 70
TBL3, X3, SCR3, W4, HC = 102400, 105472, 0, 0, 148
SPIN = 1 << 18


class Stamps:
    N = 8
    def __init__(s, a, on): s.a, s.on = a, on
    def begin(s):
        if s.on:
            s.a(f"s_load_dwordx2 s[100:101], s[0:1], {ARG_WS}\ns_memtime s[78:79]\ns_memrealtime s[96:97]")
            for k in range(s.N): s.a(f"s_mov_b32 s{80+2*k}, 0")
    def at(s, k):
        if s.on and not OPT.get('rt'): s.a(f"s_memtime s[{80+2*k}:{81+2*k}]")
    def rt(s, k):
        if s.on and OPT.get('rt'): s.a(f"s_memrealtime s[{80+2*k}:{81+2*k}]")
    def end(s, region=0):
        if not s.on: return
        a = s.a
        a("s_waitcnt vmcnt(0)\ns_memrealtime s[98:99]\ns_memtime s[6:7]\ns_waitcnt lgkmcnt(0)")
        a(f"s_lshl_b32 s3, s2, 3\ns_add_u32 s3, s3, s{sW}\ns_lshl_b32 s3, s3, 6\ns_add_u32 s3, s3, {WS_TL + s.on[1] * 65536 + region * 131072}")
        a("v_mov_b32 v4, s96\nv_mov_b32 v5, s98\nv_mov_b32 v1, s3\ns_sub_u32 s6, s6, s78\nv_mov_b32 v6, s6\nv_mov_b32 v7, 0")
        if OPT.get('rt'): a("s_mov_b32 s78, 0")
        for k in range(s.N): a(f"s_sub_u32 s{80+2*k}, s{80+2*k}, s78\nv_mov_b32 v{8+k}, s{80+2*k}")
        a("s_mov_b64 exec, 1")
        for k in range(3): a(f"global_store_dwordx4 v1, v[{4+4*k}:{7+4*k}], s[100:101] offset:{16*k}")


class Queue:
    def __init__(s, a, kind, cap): s.a, s.kind, s.cap, s.n, s.done = a, kind, cap, 0, 0
    def issue(s, text):
        s.a(text); s.n += 1
        assert s.n - s.done <= s.cap, "too many outstanding"
        return s.n
    def wait(s, tag):
        if tag > s.done:
            s.a(f"s_waitcnt {s.kind}({s.n - tag})"); s.done = tag


OPT = {}
def gen_fused(a, name="fused_kernel", stamp=False, swap_at=0x7d, bar_at=(1, 5), prio4=True, dist3=12, dist5=10, tail_at=6, w5pre=22, c4=2, lprio=0, lst=False, rt=False, pollfirst=False, sleep=4, pollmask=True, rot=True, up3=4, dbl=False, nt='', wd_at='none', abl=()):
    OPT.update(rt=rt, pollfirst=pollfirst, lprio=lprio, lst=lst, nt=nt, wd_at=wd_at, abl=abl, w5pre=w5pre)
    at = Attn(a, name, False, 0, swap_at, 0, "sc1", (), 4, bar_at, False)
    at.bar_extra = 1 << tail_at
    L = at.L
    st = Stamps(a, stamp)
    wsr = f"s[{WS}:{WS+3}]"

    def flag_store(phase, slot_sgpr):
        a(f"s_lshl_b32 s40, s{slot_sgpr}, 7\ns_lshl_b32 s41, s{sW}, 2\ns_add_u32 s40, s40, s41\ns_add_u32 s40, s40, {WS_FLG + phase * 32768}")
        a("v_mov_b32 v10, 1\nv_mov_b32 v11, 0\ns_waitcnt vmcnt(0)\ns_mov_b64 exec, 1")
        a(f"buffer_store_dword v10, v11, {wsr}, s40 offen sc1\ns_mov_b64 exec, -1")

    def poll(phase, group_sgpr, words):
        a(f"s_lshl_b32 s40, s{group_sgpr}, 12\ns_add_u32 s40, s40, {WS_FLG + phase * 32768}\ns_mov_b32 s41, {SPIN}")
        vo = 4 if words == 8 else 5
        a.label(L(f"poll{phase}"))
        a(f"buffer_load_dwordx4 v[8:11], v{vo}, {wsr}, s40 offen sc1\ns_sub_u32 s41, s41, 1\ns_cbranch_scc1 {L(f'polled{phase}')}")
        a("s_waitcnt vmcnt(0)\nv_and_b32 v8, v8, v9\nv_and_b32 v10, v10, v11\nv_and_b32 v8, v8, v10\nv_cmp_ne_u32 vcc, 1, v8\ns_nop 1")
        a(f"s_cbranch_vccz {L(f'polled{phase}')}")
        if pollmask: a("s_mov_b64 exec, vcc")
        if sleep: a(f"s_sleep {sleep}")
        a(f"s_branch {L(f'poll{phase}')}")
        a.label(L(f"polled{phase}"))
        a("s_mov_b64 exec, -1")

    a(f".p2align 8\n.type {name},@function\n{name}:")
    a(f"s_cmp_ge_u32 s2, 256\ns_cbranch_scc1 {L('exit')}")
    a(f"s_load_dwordx2 s[4:5], s[0:1], {ARG_WS}")
    a(f"s_load_dwordx2 s[{pWO}:{pWO+1}], s[0:1], {ARG_WO}\ns_load_dwordx4 s[{pWG}:{pWG+3}], s[0:1], {ARG_WG}\ns_load_dwordx2 s[{pWD}:{pWD+1}], s[0:1], {ARG_WD}")
    a(f"s_load_dwordx2 s[{pX}:{pX+1}], s[0:1], {ARG_X}\ns_load_dwordx2 s[{pOUT}:{pOUT+1}], s[0:1], {ARG_OUT}")
    st.begin()
    a(f"s_and_b32 s{sGrp}, s2, 7\ns_lshr_b32 s{sCb8}, s2, 5")
    a(f"s_lshl_b32 s{sRb64}, s{sGrp}, 2\ns_bfe_u32 s6, s2, 0x20003\ns_add_u32 s{sRb64}, s{sRb64}, s6")
    if c4 == 1:
        a(f"s_mov_b32 s{sRb256}, s{sGrp}\ns_lshr_b32 s{sCb32}, s2, 3")
    else:
        a(f"s_and_b32 s{sRb256}, s2, 6\ns_bfe_u32 s6, s2, 0x10003\ns_add_u32 s{sRb256}, s{sRb256}, s6")
        a(f"s_and_b32 s{sCb32}, s2, 1\ns_lshl_b32 s{sCb32}, s{sCb32}, 4\ns_lshr_b32 s6, s2, 4\ns_add_u32 s{sCb32}, s{sCb32}, s6")
    a(f"s_mul_i32 s6, s{sCb32}, 13\ns_lshr_b32 s6, s6, 6\ns_mul_i32 s6, s6, 5\ns_sub_u32 s{sRot4}, s{sCb32}, s6")
    a(f"s_mul_i32 s6, s{sCb8}, 11\ns_lshr_b32 s6, s6, 5\ns_mul_i32 s6, s6, 3\ns_sub_u32 s{sRot5}, s{sCb8}, s6")
    if not rot: a(f"s_mov_b32 s{sRot4}, 0\ns_mov_b32 s{sRot5}, 0")
    at.prologue()
    st.at(0)
    at.loop()
    a("s_waitcnt lgkmcnt(0)")
    st.at(1); st.rt(0)
    at.epilogue()
    vT16, vQ, vWA, vTB, vO, vO2, vRA, vS1, vS2, vL16 = 2, 3, 4, 5, 6, 7, 8, 9, 12, 1
    MUX, ACC, WB, OF, XR = 13, 16, 40, 96, 136
    a(f"s_and_b32 s{sTg}, s{sW}, 3\ns_lshr_b32 s{sKh}, s{sW}, 2")
    a(f"v_and_b32 v{vT16}, 15, v0\nv_lshrrev_b32 v{vQ}, 4, v0")
    a(f"s_lshl_b32 s42, s{sRb64}, 8\ns_lshl_b32 s43, s{sTg}, 6\ns_add_u32 s42, s42, s43\ns_add_u32 s43, s42, {WS_MUX}\nv_lshlrev_b32 v14, 2, v{vT16}")
    a(f"buffer_load_dword v{MUX}, v14, {wsr}, s43 offen")
    a(f"s_mul_i32 s43, s{sCb8}, 8192\ns_add_u32 s46, s42, s43\ns_add_u32 s46, s46, {WS_ST}")
    a(f"s_mul_i32 s42, s{sKh}, 51200\nv_add_u32 v{vWA}, s42, v{vL16}")
    a(f"s_mul_i32 s42, s{sKh}, 1280\ns_add_u32 s42, s42, {TBL3}\nv_and_b32 v10, 1, v0\nv_lshlrev_b32 v10, 4, v10\nv_lshl_add_u32 v10, v{vQ}, 5, v10\nv_add_u32 v{vTB}, s42, v10")
    a(f"v_lshrrev_b32 v10, 5, v0\nv_mul_u32_u24 v10, 1280, v10\nv_bfe_u32 v11, v0, 4, 1\nv_lshl_add_u32 v10, v11, 9, v10\nv_lshl_add_u32 v{vO}, v{vT16}, 4, v10")
    a(f"v_mul_u32_u24 v10, 2560, v{vQ}\nv_lshl_add_u32 v10, v{vT16}, 3, v10\nv_add_u32 v{vO2}, 1024, v10")
    a(f"s_lshl_b32 s42, s{sTg}, 4\nv_add_u32 v10, s42, v{vT16}\nv_mul_u32_u24 v10, 160, v10\nv_lshl_add_u32 v10, v{vQ}, 3, v10\nv_add_u32 v{vRA}, {X3}, v10")
    a(f"s_lshl_b32 s42, s{sRb64}, 1\ns_lshr_b32 s43, s{sTg}, 1\ns_add_u32 s47, s42, s43\ns_and_b32 s48, s{sTg}, 1")
    a(f"s_mul_i32 s44, s47, {O_TILE}\ns_mul_i32 s43, s{sKh}, 20480\ns_add_u32 s44, s44, s43\ns_add_u32 s44, s44, {WS_O}")
    a(f"s_lshl_b32 s43, s48, 7\ns_add_u32 s45, s44, s43\ns_add_u32 s44, s45, s43")
    for r in range(24): a(f"v_mov_b32 v{ACC+r}, 0")
    flag_store(0, 2)
    st.rt(1)
    a("s_barrier\ns_barrier")
    st.at(2); st.rt(2)
    vm, lg = Queue(a, "vmcnt", 63), Queue(a, "lgkmcnt", 15)
    otag = {}
    def oload(s_):
        if s_ < 2:
            vm.issue(f"buffer_load_dwordx2 {vr(OF+4*s_,2)}, v{vO2}, {wsr}, s45 offen sc1")
            otag[s_] = vm.issue(f"buffer_load_dwordx2 {vr(OF+4*s_+2,2)}, v{vO2}, {wsr}, s45 offen offset:1280 sc1")
            if s_ == 0: a("s_add_u32 s45, s45, 10240")
        else:
            otag[s_] = vm.issue(f"buffer_load_dwordx4 {vr(OF+4*s_,4)}, v{vO}, {wsr}, s44 offen sc1")
            a("s_add_u32 s44, s44, 2560")
    UP3 = up3
    for s_ in range(UP3): oload(s_)
    for j in range(5): lg.issue(f"ds_read_b64 {vr(XR+2*j,2)}, v{vRA} offset:{j*32}")
    items = [(s_, j) for s_ in range(10) for j in range(6)]
    NB3, wtag = dist3 + 1, {}
    def wread3(n):
        if n >= len(items): return
        s_, j = items[n]; b = WB + 4 * (n % NB3)
        if j == 5:
            wtag[n] = lg.issue(f"ds_read_b128 {vr(b,4)}, v{vTB} offset:{s_*128}")
        else:
            wtag[n] = lg.issue(f"ds_read_b128 {vr(b,4)}, v{vWA} offset:{s_*5120 + j*1024}")
    lg.wait(1)
    for n in range(dist3):
        if lg.n - lg.done > 13: lg.wait(lg.done + 2)
        wread3(n)
    for n, (s_, j) in enumerate(items):
        if j == 0 and 'p3nowait' not in abl: vm.wait(otag[s_])
        if n % 3 == 0: lg.wait(wtag[min(n + 2, len(items) - 1)])
        a(f"v_mfma_f32_16x16x32_bf16 {vr(ACC+4*j,4)}, {vr(WB+4*(n % NB3),4)}, {vr(OF+4*s_,4)}, {vr(ACC+4*j,4)}")
        wread3(n + dist3)
        if j == 1 and s_ + UP3 < 10: oload(s_ + UP3)
    a("s_barrier")
    st.at(3)
    a(f"s_mul_i32 s42, s{sTg}, 6144\nv_lshl_add_u32 v10, v0, 4, s42\ns_cmp_eq_u32 s{sKh}, 0\ns_cbranch_scc1 {L('p3_fin')}\ns_nop 2")
    for j in range(6): a(f"ds_write_b128 v10, {vr(ACC+4*j,4)} offset:{SCR3 + j*1024}")
    a(f"s_waitcnt lgkmcnt(0)\ns_barrier\ns_branch {L('p3_done')}")
    a.label(L("p3_fin"))
    U = 64
    for j in range(5):
        for e in range(2):
            a(f"v_lshlrev_b32 v{HC+4*j+2*e}, 16, v{XR+2*j+e}\nv_and_b32 v{HC+4*j+2*e+1}, 0xffff0000, v{XR+2*j+e}")
    for r in range(0, 20, 2):
        a(f"v_pk_add_f32 {vr(HC+r,2)}, {vr(HC+r,2)}, {vr(ACC+r,2)}")
    a(f"v_add_f32 v{MUX}, v{MUX}, v{ACC+20}\nv_add_f32 v{MUX}, v{MUX}, v{ACC+21}")
    a(f"v_lshrrev_b32 v11, 1, v{vQ}\nv_lshlrev_b32 v11, 9, v11\nv_lshl_add_u32 v15, v{vT16}, 4, v11\nv_and_b32 v11, 1, v{vQ}\nv_lshl_add_u32 v{vS2}, v11, 10, v15")
    a(f"s_mul_i32 s44, s47, {H_TILE}\ns_mul_i32 s43, s{sCb8}, 5120\ns_add_u32 s44, s44, s43\ns_lshl_b32 s43, s48, 8\ns_add_u32 s44, s44, s43\ns_add_u32 s44, s44, {WS_H}\ns_add_u32 s45, s44, 4096")
    a("s_barrier")
    for j in range(6): a(f"ds_read_b128 {vr(WB+4*j,4)}, v10 offset:{SCR3 + j*1024}")
    a("s_waitcnt lgkmcnt(1)")
    for r in range(0, 20, 2):
        a(f"v_pk_add_f32 {vr(HC+r,2)}, {vr(HC+r,2)}, {vr(WB+r,2)}")
    a(f"s_waitcnt lgkmcnt(0)\nv_add_f32 v{MUX}, v{MUX}, v{WB+20}\nv_add_f32 v{MUX-1+2}, v{MUX}, v{WB+21}")
    for r in range(0, 20, 2):
        a(f"v_pk_add_f32 {vr(ACC+r,2)}, {vr(HC+r,2)}, v[14:15] op_sel_hi:[1,0] neg_lo:[0,1] neg_hi:[0,1]")
    for r in range(10):
        a(f"v_cvt_pk_bf16_f32 v{U+r}, v{ACC+2*r}, v{ACC+2*r+1}")
    a(f"v_mov_b32 v{U+10}, v{U+8}\nv_mov_b32 v{U+11}, v{U+9}\nv_pk_mul_f32 v[10:11], {vr(ACC,2)}, {vr(ACC,2)}")
    for k in range(3):
        a(f"v_permlane16_swap_b32 v{U+4*k}, v{U+4*k+2}\nv_permlane16_swap_b32 v{U+4*k+1}, v{U+4*k+3}")
    for k in range(2):
        a(f"buffer_store_dwordx4 {vr(U+4*k,4)}, v{vS2}, {wsr}, s44 offen offset:{k*2048} sc1")
    a("s_mov_b32 exec_lo, 0xffff\ns_mov_b32 exec_hi, 0xffff")
    a(f"buffer_store_dwordx4 {vr(U+8,4)}, v15, {wsr}, s45 offen sc1\ns_mov_b64 exec, -1")
    for r in range(2, 20, 2):
        a(f"v_pk_fma_f32 v[10:11], {vr(ACC+r,2)}, {vr(ACC+r,2)}, v[10:11]")
    a("v_add_f32 v10, v10, v11\nv_mov_b32 v11, v10\ns_nop 1\nv_permlane32_swap_b32 v10, v11\nv_add_f32 v10, v10, v11\nv_mov_b32 v11, v10")
    a(f"v_lshlrev_b32 v14, 2, v{vT16}\ns_nop 0\nv_permlane16_swap_b32 v10, v11\nv_add_f32 v10, v10, v11\ns_mov_b64 exec, 0xffff")
    a(f"buffer_store_dword v10, v14, {wsr}, s46 offen sc1\ns_mov_b64 exec, -1")
    a(f"s_lshl_b32 s42, s{sRb64}, 3\ns_add_u32 s42, s42, s{sCb8}")
    flag_store(1, 42)
    st.rt(3)
    a.label(L("p3_done"))
    a("s_barrier")
    A4, W4B, T4, PT = 16, 64, 88, 120
    acc4 = lambda m, j, i: A4 + ((m * 3 + j) * 2 + i) * 4
    a(f"v_add_u32 v{vWA}, {W4}, v{vL16}")
    a(f"v_lshlrev_b32 v10, 9, v{vQ}\nv_lshl_add_u32 v{vO}, v{vT16}, 4, v10")
    a(f"s_lshl_b32 s49, s{sRb256}, 3\ns_add_u32 s49, s49, s{sW}\ns_mul_i32 s52, s49, {H_TILE}\ns_add_u32 s52, s52, {WS_H}\ns_mov_b32 s53, s{sRot4}\ns_lshl_b32 s44, s53, 13\ns_add_u32 s44, s44, s52")
    a(f"s_lshl_b32 s45, s49, 7\ns_add_u32 s45, s45, {WS_ST}\nv_lshlrev_b32 v10, 14, v{vQ}\nv_lshl_add_u32 v{vO2}, v{vT16}, 2, v10\ns_add_u32 s46, s45, 8192")
    a(f"s_mul_i32 s50, s49, {FF_TILE}\ns_mul_i32 s43, s{sCb32}, 3072\ns_add_u32 s50, s50, s43\ns_add_u32 s50, s50, {WS_FF}")
    for r in range(48): a(f"v_mov_b32 v{A4+r}, 0")
    a("s_mov_b32 s51, 0")
    if prio4:
        a(f"s_setprio 1\ns_cmp_eq_u32 s{sKh}, 0\ns_cbranch_scc0 {L('p4_prio')}\ns_setprio 2")
        a.label(L("p4_prio"))
    a("s_barrier")
    st.at(4); st.rt(4)
    def hload(s_):
        for i in range(0 if 'p4noload' in abl else 2):
            a(f"buffer_load_dwordx4 {vr(T4+8*(s_ % 4)+4*i,4)}, v{vO}, {wsr}, s44 offen offset:{i*256} sc1")
        a("s_add_u32 s44, s44, 2048")
    def wread4(s_, t):
        m, j = t % 2, t // 2
        a(f"ds_read_b128 {vr(W4B+4*t,4)}, v{vWA} offset:{s_*6144 + m*3072 + j*1024}")
    hload(0)
    for i in range(2):
        for e in range(2):
            a(f"buffer_load_dword v{PT+2*i+e}, v{vO2}, {wsr}, s{45+e} offen offset:{i*64} sc1")
    for s_ in range(1, 4): hload(s_)
    for t in range(6): wread4(0, t)
    a("s_waitcnt vmcnt(10)")
    a(".p2align 3")
    a.label(L("p4_loop"))
    for s_ in range(4):
        if s_ == 0:
            a("s_add_u32 s53, s53, 1\ns_cmp_eq_u32 s53, 5\ns_cselect_b32 s53, 0, s53\ns_lshl_b32 s44, s53, 13\ns_add_u32 s44, s44, s52")
            a(f"s_cmp_eq_u32 s51, 4\ns_cselect_b32 s44, {OOB}, s44")
        if 'p4nowait' not in abl: a("s_waitcnt vmcnt(6)")
        for t in range(6):
            m, j = t % 2, t // 2
            if t % 2 == 0: a("s_waitcnt lgkmcnt(4)")
            for i in range(2):
                a(f"v_mfma_f32_16x16x32_bf16 {vr(acc4(m,j,i),4)}, {vr(W4B+4*t,4)}, {vr(T4+8*s_+4*i,4)}, {vr(acc4(m,j,i),4)}")
            wread4(s_ + 1, t)
        hload(s_)
    a(f"v_add_u32 v{vWA}, {4*6144}, v{vWA}\ns_add_u32 s51, s51, 1\ns_cmp_lt_u32 s51, 5\ns_cbranch_scc1 {L('p4_loop')}")
    a(f"s_waitcnt lgkmcnt(0)\ns_cmp_eq_u32 s{sKh}, 0\ns_cbranch_scc1 {L('p4_lead')}\ns_barrier")
    a.label(L("p4_lead"))
    a("s_setprio 0")
    st.at(5)
    RR, C0, C1 = 124, 126, 128
    k0 = -2 * 1.4426950408889634 * math.sqrt(2 / math.pi)
    for i in range(2):
        q = PT + 2 * i
        a(f"v_add_f32 v{q}, v{q}, v{q+1}\nv_mov_b32 v{q+1}, v{q}")
    a("s_nop 0")
    for i in range(2):
        q = PT + 2 * i
        a(f"v_permlane32_swap_b32 v{q}, v{q+1}\nv_add_f32 v{q}, v{q}, v{q+1}\nv_mov_b32 v{q+1}, v{q}")
    a("s_nop 0")
    for i in range(2):
        q = PT + 2 * i
        a(f"v_permlane16_swap_b32 v{q}, v{q+1}\nv_add_f32 v{q}, v{q}, v{q+1}")
        a(f"v_mov_b32 v{RR+i}, {f2u(1e-5):#x}\nv_fmac_f32 v{RR+i}, {f2u(1/640):#x}, v{q}\nv_rsq_f32 v{q}, v{RR+i}\ns_nop 0")
        a(f"v_mul_f32 v{C0+i}, {f2u(k0):#x}, v{q}\nv_mul_f32 v{q}, v{q}, v{q}\nv_mul_f32 v{q}, {f2u(0.044715):#x}, v{q}\nv_mul_f32 v{C1+i}, v{C0+i}, v{q}")
    T_ = W4B
    for j in range(3):
        G = lambda i, r: acc4(0, j, i) + r
        Uu = lambda i, r: acc4(1, j, i) + r
        pr = [(i, r) for i in range(2) for r in (0, 2)]
        sel2 = lambda i: f"op_sel:[0,{i},{i}] op_sel_hi:[1,{i},{i}]"
        for i, r in pr: a(f"v_pk_mul_f32 {vr(T_+4*i+r,2)}, {vr(G(i,r),2)}, {vr(G(i,r),2)}")
        for i, r in pr: a(f"v_pk_fma_f32 {vr(T_+4*i+r,2)}, {vr(T_+4*i+r,2)}, {vr(C1,2)}, {vr(C0,2)} {sel2(i)}")
        for i, r in pr: a(f"v_pk_mul_f32 {vr(T_+4*i+r,2)}, {vr(T_+4*i+r,2)}, {vr(G(i,r),2)}")
        for r in range(8): a(f"v_exp_f32 v{T_+r}, v{T_+r}")
        for i, r in pr: a(f"v_pk_mul_f32 {vr(G(i,r),2)}, {vr(G(i,r),2)}, {vr(Uu(i,r),2)}")
        for i, r in pr: a(f"v_pk_fma_f32 {vr(T_+4*i+r,2)}, {vr(T_+4*i+r,2)}, {vr(RR,2)}, {vr(RR,2)} {sel2(i)}")
        for r in range(8): a(f"v_rcp_f32 v{T_+r}, v{T_+r}")
        a("s_nop 0")
        for i, r in pr: a(f"v_pk_mul_f32 {vr(G(i,r),2)}, {vr(G(i,r),2)}, {vr(T_+4*i+r,2)}")
        P_ = W4B + 8 + 4 * j
        for i in range(2):
            for e in range(2): a(f"v_cvt_pk_bf16_f32 v{P_+2*i+e}, v{G(i,2*e)}, v{G(i,2*e+1)}")
        a(f"s_nop 1\nv_permlane16_swap_b32 v{P_}, v{P_+2}\nv_permlane16_swap_b32 v{P_+1}, v{P_+3}")
        a(f"buffer_store_dwordx4 {vr(P_,4)}, v{vL16}, {wsr}, s50 offen offset:{j*1024} sc1")
    a(f"s_cmp_eq_u32 s{sKh}, 0\ns_cbranch_scc0 {L('p4_lag')}\ns_barrier")
    a.label(L("p4_lag"))
    A5, W5B, F5, NB5 = 16, 36, 116, 20
    vCur, vNxt = vWA, vTB
    a(f"s_mul_i32 s42, s{sKh}, 5120\nv_add_u32 v{vCur}, s42, v{vL16}\nv_add_u32 v{vNxt}, 81920, v{vCur}")
    a(f"s_mul_i32 s44, s47, {FF_TILE}\ns_mul_i32 s43, s{sKh}, 49152\ns_add_u32 s44, s44, s43\ns_lshl_b32 s43, s48, 8\ns_add_u32 s44, s44, s43\ns_add_u32 s52, s44, {WS_FF}")
    a(f"s_mov_b32 s53, s{sRot5}\ns_lshl_b32 s44, s53, 14\ns_add_u32 s44, s44, s52")
    for r in range(20): a(f"v_mov_b32 v{A5+r}, 0")
    a("s_mov_b32 s51, 0\ns_setprio 0")
    a(f"s_lshl_b32 s42, s{sRb256}, 5\ns_add_u32 s42, s42, s{sCb32}")
    flag_store(2, 42)
    st.rt(5)
    a("s_barrier\ns_barrier")
    st.at(6); st.rt(6)
    def fload(s_):
        a(f"buffer_load_dwordx4 {vr(F5+4*(s_ % 8),4)}, v{vO}, {wsr}, s44 offen sc1\ns_add_u32 s44, s44, 2048")
    def wread5(n):
        s_, j = divmod(n, 5)
        reg, so = (vCur, s_) if s_ < 6 else (14, s_ - 6) if s_ < 8 else (vNxt, s_ - 8)
        a(f"ds_read_b128 {vr(W5B+4*(n % NB5),4)}, v{reg} offset:{so*10240 + j*1024}")
    for s_ in range(8): fload(s_)
    a(f"v_add_u32 v14, 61440, v{vCur}")
    for n in range(dist5): wread5(n)
    a(".p2align 3")
    a.label(L("p5_loop"))
    for n in range(40):
        s_, j = divmod(n, 5)
        if n == 0:
            a("s_add_u32 s53, s53, 1\ns_cmp_eq_u32 s53, 3\ns_cselect_b32 s53, 0, s53\ns_lshl_b32 s44, s53, 14\ns_add_u32 s44, s44, s52")
            a(f"s_cmp_eq_u32 s51, 2\ns_cselect_b32 s44, {OOB}, s44")
        if j == 0 and 'p5nowait' not in abl: a("s_waitcnt vmcnt(7)")
        if j == 0: a(f"s_waitcnt lgkmcnt({dist5-5})")
        if n == 10:
            a(f"s_cbranch_scc1 {L('p5_barA')}")
            a.label(L("p5_backA"))
        if n == 30:
            a(f"s_cbranch_scc0 {L('p5_barB')}")
            a.label(L("p5_backB"))
        a(f"v_mfma_f32_16x16x32_bf16 {vr(A5+4*j,4)}, {vr(W5B+4*(n % NB5),4)}, {vr(F5+4*s_,4)}, {vr(A5+4*j,4)}")
        wread5(n + dist5)
        if j == 4 and 'p5noload' not in abl:
            a(f"buffer_load_dwordx4 {vr(F5+4*s_,4)}, v{vO}, {wsr}, s44 offen sc1\ns_cselect_b32 s43, 0, 2048\ns_cselect_b32 s42, 1, 0\ns_add_u32 s44, s44, s43\ns_cmp_eq_u32 s42, 1")
    a(f"v_swap_b32 v{vCur}, v{vNxt}\ns_add_u32 s51, s51, 1\ns_cmp_lt_u32 s51, 3\nv_add_u32 v14, 61440, v{vCur}\ns_cbranch_scc1 {L('p5_loop')}")
    a("s_waitcnt lgkmcnt(0)\ns_barrier")
    st.at(7); st.rt(7)
    a(f"s_mul_i32 s42, s{sTg}, 5120\nv_lshl_add_u32 v10, v0, 4, s42\ns_cmp_eq_u32 s{sKh}, 0\ns_cbranch_scc1 {L('p5_fin')}\ns_nop 2")
    for j in range(5): a(f"ds_write_b128 v10, {vr(A5+4*j,4)} offset:{j*1024}")
    a(f"s_waitcnt lgkmcnt(0)\ns_barrier\ns_branch {L('done')}")
    a.label(L("p5_fin"))
    srd(a, 12, pOUT, S * D * 2)
    a(f"v_mul_u32_u24 v11, 1280, v{vT16}\nv_lshrrev_b32 v14, 1, v{vQ}\nv_lshl_add_u32 v15, v14, 4, v11\nv_and_b32 v14, 1, v{vQ}\nv_lshl_add_u32 v{vS2}, v14, 5, v15")
    a(f"s_lshl_b32 s44, s{sRb64}, 2\ns_add_u32 s44, s44, s{sTg}\ns_mul_i32 s44, s44, {16*1280}\ns_mul_i32 s43, s{sCb8}, 160\ns_add_u32 s44, s44, s43")
    for r in range(0, 20, 2):
        a(f"v_pk_add_f32 {vr(HC+r,2)}, {vr(HC+r,2)}, {vr(A5+r,2)}")
    a("s_barrier")
    for j in range(5): a(f"ds_read_b128 {vr(W5B+4*j,4)}, v10 offset:{j*1024}")
    for j in range(5):
        a(f"s_waitcnt lgkmcnt({4-j})")
        for r in (0, 2): a(f"v_pk_add_f32 {vr(HC+4*j+r,2)}, {vr(HC+4*j+r,2)}, {vr(W5B+4*j+r,2)}")
        for e in range(2): a(f"v_cvt_pk_bf16_f32 v{U+2*j+e}, v{HC+4*j+2*e}, v{HC+4*j+2*e+1}")
    a(f"v_mov_b32 v{U+10}, v{U+8}\nv_mov_b32 v{U+11}, v{U+9}")
    for k in range(3):
        a(f"v_permlane16_swap_b32 v{U+4*k}, v{U+4*k+2}\nv_permlane16_swap_b32 v{U+4*k+1}, v{U+4*k+3}")
    for k in range(2):
        a(f"buffer_store_dwordx4 {vr(U+4*k,4)}, v{vS2}, s[12:15], s44 offen offset:{k*64}")
    a("s_mov_b32 exec_lo, 0xffff\ns_mov_b32 exec_hi, 0xffff")
    a(f"buffer_store_dwordx4 {vr(U+8,4)}, v15, s[12:15], s44 offen offset:128\ns_mov_b64 exec, -1")
    a.label(L("done"))
    st.end()
    a.label(L("exit"))
    a("s_endpgm")
    a.label(L("p5_barA"))
    a(f"s_barrier\ns_branch {L('p5_backA')}")
    a.label(L("p5_barB"))
    a(f"s_barrier\ns_branch {L('p5_backB')}")

    at.loader_setup = lambda: loader_setup(a, L)
    at.loader_early = lambda: loader_early(a)
    at.loader_tail = lambda: loader_tail(a, L, poll, flag_store, st)
    at.rare()
    at.slow()
    a.label(f"{name}_codeend")
    return dict(name=name, grid=256, block=768, lds=163840, nvgpr=168, nstamp=8, fused=True)


vX, vG, vT96, vSc, ST, DUMMY = 12, 17, 20, 21, 32, 24
EXTRA = (28, 152, 156, 160, 164)

def loader_setup(a, L):
    a("s_mov_b32 s54, 6554\ns_mov_b32 s55, 10923")
    for i in range(3):
        a(f"v_add_u32 v2, {64*i}, v0\nv_mul_u32_u24 v3, s55, v2\nv_lshrrev_b32 v3, 16, v3\nv_mul_u32_u24 v6, 6, v3\nv_sub_u32 v6, v2, v6")
        swap23(a, 3, 7)
        a(f"v_mul_u32_u24 v10, 3072, v7\nv_lshl_add_u32 v{vG+i}, v6, 4, v10")
    a(f"s_mul_i32 s47, s{sW}, 5120\nv_add_u32 v{vSc}, s47, v1")
    tr_lane_addr(a, 96, vT96, 47)
    for i in range(5):
        a(f"v_add_u32 v2, {64*i}, v0\nv_mul_u32_u24 v3, s54, v2\nv_lshrrev_b32 v3, 16, v3\nv_mul_u32_u24 v3, 1120, v3\nv_lshl_add_u32 v{vX+i}, v2, 4, v3")
    a("v_lshrrev_b32 v4, 1, v0\nv_lshlrev_b32 v4, 7, v4\nv_and_b32 v5, 1, v0\nv_lshl_add_u32 v4, v5, 4, v4\nv_and_b32 v5, 31, v0\nv_lshlrev_b32 v5, 7, v5")


def sweep(a, srd_, sreg, cnt):
    for k in range(cnt):
        a(f"buffer_load_dwordx4 {vr(DUMMY, 4)}, v1, s[{srd_}:{srd_+3}], s{sreg} offen offset:{(k % 4) * 1024}")
        if k % 4 == 3: a(f"s_add_u32 s{sreg}, s{sreg}, 4096")


def loader_early(a):
    a(f"s_mul_i32 s34, s{sCb8}, {IMG_CB}\ns_add_u32 s34, s34, {WS_IMG}\ns_mul_i32 s31, s{sCb8}, 160")
    a(f"s_and_b32 s48, s{sRb64}, 3\ns_lshl_b32 s48, s48, 2\ns_add_u32 s48, s48, s{sW}\ns_mul_i32 s33, s48, 6400\ns_add_u32 s33, s33, s34")
    sweep(a, WS, 33, 7)
    srd(a, 24, pX, S * D * 2)
    a(f"s_lshr_b32 s32, s2, 3\ns_lshl_b32 s32, s32, 2\ns_add_u32 s32, s32, s{sW}\ns_mul_i32 s33, s32, 2560\ns_mul_i32 s35, s{sGrp}, {256*1280}\ns_add_u32 s33, s33, s35")
    sweep(a, 24, 33, 3)
    return 10


def loader_tail(a, L, poll, flag_store, st):
    wsr = f"s[{WS}:{WS+3}]"
    st2 = st
    if OPT['lst']: st = Stamps(a, False)
    else: st2 = Stamps(a, False)
    st2.at(0)
    def dma_run(label, count):
        a(f"s_mov_b32 s35, {count}")
        a.label(L(label))
        a(f"s_mov_b32 m0, s33\ns_add_u32 s33, s33, 1024\nbuffer_load_dwordx4 v1, {wsr}, s32 offen lds\ns_add_u32 s32, s32, 1024")
        a(f"s_sub_u32 s35, s35, 1\ns_cmp_lg_u32 s35, 0\ns_cbranch_scc1 {L(label)}")
    srd(a, 12, pWG, D * DF * 2)
    srd(a, 16, pWU, D * DF * 2)
    a(f"s_mul_i32 s47, s{sCb32}, 96\ns_mul_i32 s32, s{sW}, 5\ns_lshl_b32 s33, s{sRot4}, 2\ns_add_u32 s32, s32, s33")
    for k in range(5):
        a(f"s_cmp_ge_u32 s32, 20\ns_cselect_b32 s33, 20, 0\ns_sub_u32 s32, s32, s33\ns_mul_i32 s33, s32, {32*3072}\ns_add_u32 s33, s33, s47\ns_add_u32 s32, s32, 1")
        for m in range(2):
            for i in range(3):
                a(f"buffer_load_dwordx4 {vr(ST + ((k*2+m)*3+i)*4, 4)}, v{vG+i}, s[{12+4*m}:{15+4*m}], s33 offen")
    st2.at(1)
    a(f"s_mul_i32 s33, s48, 15360\ns_add_u32 s33, s33, s34\ns_add_u32 s33, s33, 102400")
    sweep(a, WS, 33, 15)
    st2.at(2)
    a("s_waitcnt vmcnt(15)")
    st2.at(3)
    for b in range(10):
        lds_transpose(a, [ST + (b*3+i)*4 for i in range(3)], vSc, vT96, 768)
    st2.at(4)
    a(f"s_mul_i32 s33, s{sW}, 25600\ns_add_u32 s32, s33, s34")
    a("s_waitcnt vmcnt(0)")
    st.at(0); st2.at(5)
    a("s_barrier")
    st2.at(6)
    dma_run("l_w3", 25)
    a(f"s_cmp_ge_u32 s{sW}, 2\ns_cbranch_scc1 {L('l_x')}\ns_cmp_eq_u32 s{sW}, 0\ns_cbranch_scc1 {L('l_a2')}")
    a(f"s_mov_b32 s32, {WS_TBL}\ns_mov_b32 s33, {TBL3}")
    dma_run("l_tbl", 3)
    a(f"s_branch {L('l_a2')}")
    a.label(L("l_x"))
    a(f"s_lshl_b32 s32, s{sRb64}, 1\ns_add_u32 s32, s32, s{sW}\ns_sub_u32 s32, s32, 2\ns_mul_i32 s32, s32, {32*1280}\ns_add_u32 s32, s32, s31")
    a(f"s_mul_i32 s33, s{sW}, 5120\ns_add_u32 s33, s33, {X3 - 10240}")
    for i in range(5):
        a(f"s_mov_b32 m0, s33\ns_add_u32 s33, s33, 1024\nbuffer_load_dwordx4 v{vX+i}, s[24:27], s32 offen lds")
    a.label(L("l_a2"))
    a("s_add_u32 s34, s34, 102400")
    def wd_src(dst, slot):
        a(f"s_lshr_b32 s37, {slot}, 1\ns_lshl_b32 s38, s{sRot5}, 3\ns_add_u32 s37, s37, s38\ns_cmp_ge_u32 s37, 24\ns_cselect_b32 s38, 24, 0\ns_sub_u32 s37, s37, s38")
        a(f"s_and_b32 s38, {slot}, 1\ns_mul_i32 s38, s38, 24\ns_add_u32 s37, s37, s38\ns_mul_i32 s{dst}, s37, 5120\ns_add_u32 s{dst}, s{dst}, s34")
    for u in range(6):
        a(f"s_mul_i32 s39, s{sW}, 6\ns_add_u32 s39, s39, {u}"); wd_src(46 + u, "s39")
    regs5 = [ST + 4 * p for p in range(25)] + list(EXTRA)
    def stage(p, sreg, regs):
        if p % 5 == 4: a(f"s_add_u32 s{sreg}, s{sreg}, 4096")
        a(f"buffer_load_dwordx4 {vr(regs[p], 4)}, v1, {wsr}, s{sreg} offen offset:{(p % 5 % 4) * 1024}")
    def flush(regs):
        for p, r in enumerate(regs):
            a(f"ds_write_b128 v2, {vr(r, 4)} offset:{p*1024}")
            if p % 8 == 7: a("s_waitcnt lgkmcnt(4)")
        a("s_waitcnt lgkmcnt(0)")
    a(f"s_mul_i32 s32, s{sW}, 30720\nv_add_u32 v2, s32, v1")
    a(f"s_lshl_b32 s39, s{sW}, 1\ns_add_u32 s39, s39, 24"); wd_src(32, "s39")
    a("s_mul_i32 s33, s39, 5120\ns_add_u32 s39, s39, 1"); wd_src(42, "s39")
    a("s_waitcnt vmcnt(0)")
    st.at(1)
    a("s_barrier")
    def window(tag, poller, do_poll, burst):
        if not OPT['pollfirst']:
            burst()
            a(f"s_cmp_eq_u32 s{sW}, {poller}\ns_cbranch_scc0 {L(tag + '_end')}")
            do_poll()
            a.label(L(tag + "_end"))
            st.at(int(tag[-1]))
            a("s_barrier")
            return
        a(f"s_cmp_eq_u32 s{sW}, {poller}\ns_cselect_b32 s43, 1, 0\ns_cbranch_scc0 {L(tag + '_burst')}")
        do_poll()
        st.at(int(tag[-1]))
        a("s_barrier")
        a.label(L(tag + "_burst"))
        burst()
        a(f"s_cmp_eq_u32 s43, 1\ns_cbranch_scc1 {L(tag + '_end')}")
        st.at(int(tag[-1]))
        a("s_barrier")
        a.label(L(tag + "_end"))
    def burst2():
        dma_run("l_w5a", 5)
        a("s_mov_b32 s32, s42")
        dma_run("l_w5b", 5)
        for p in range(25, 30): stage(p, 51, regs5)
    window("l_win2", 0, lambda: poll(0, sGrp, 8), burst2)
    a("s_barrier\ns_barrier")
    st.at(3)
    regs4 = [ST + 4 * p for p in range(30)]
    a(f"s_cmp_eq_u32 s{sW}, 0\ns_cbranch_scc1 {L('l_late')}")
    flush(regs4)
    a(f"s_barrier\ns_branch {L('l_a3')}")
    a.label(L("l_late"))
    a("s_barrier")
    flush(regs4)
    a.label(L("l_a3"))
    window("l_win4", 3, lambda: poll(1, sRb256, 4), lambda: [stage(p, 46 + p // 5, regs5) for p in range(25)])
    for u in range(4):
        a(f"s_lshl_b32 s39, s{sW}, 1\ns_add_u32 s39, s39, {32 + (u // 2) * 8 + u % 2}"); wd_src(46 + u, "s39")
    a("s_waitcnt vmcnt(0)\ns_barrier")
    st.at(5)
    flush(regs5)
    a("s_barrier")
    window("l_win6", 0, lambda: poll(2, sGrp, 8), lambda: [stage(p, 46 + p // 5, regs4) for p in range(20)])
    a(f"s_mul_i32 s32, s{sW}, 10240\nv_add_u32 v2, s32, v1\ns_waitcnt vmcnt(0)")
    for g in range(2):
        a("s_barrier")
        for kh in range(2):
            for i in range(5):
                a(f"ds_write_b128 v2, {vr(ST + ((g*2+kh)*5+i)*4, 4)} offset:{g*40960 + kh*5120 + i*1024}")
        a("s_waitcnt lgkmcnt(0)")
    a("s_barrier")
    (st2 if OPT['lst'] else st).end(1)
    a("s_endpgm")
```

```python
from asmlib import *
from layout import *
from k_attn import srd
import struct

def f2u(x): return struct.unpack("<I", struct.pack("<f", x))[0]
QSCALE = 1.4426950408889634 / 20 ** 0.5
OOB = 0x40000000

NSTAMP = 4
def stamp_begin(a, on):
    if on:
        a(f"s_load_dwordx2 s[94:95], s[0:1], {ARG_WS}\ns_memtime s[78:79]\ns_memrealtime s[90:91]")
        for k in range(NSTAMP): a(f"s_mov_b32 s{80+2*k}, 0")
def stamp_at(a, on, k):
    if on: a(f"s_memtime s[{80+2*k}:{81+2*k}]")
def stamp_end(a, on, exit_label, wg=77, sW=20):
    if not on: return
    a("s_memtime s[96:97]\ns_waitcnt vmcnt(0)\ns_memtime s[88:89]\ns_memrealtime s[92:93]\ns_waitcnt lgkmcnt(0)")
    a(f"s_lshl_b32 s3, s2, 3\ns_add_u32 s3, s3, s{sW}\ns_lshl_b32 s3, s3, 5\ns_add_u32 s3, s3, {WS_TL + on[1] * 65536}")
    a("v_mov_b32 v4, s90\nv_mov_b32 v5, s92\nv_mov_b32 v1, s3")
    for k in range(NSTAMP): a(f"s_sub_u32 s{80+2*k}, s{80+2*k}, s78\nv_mov_b32 v{6+k}, s{80+2*k}")
    a("s_sub_u32 s96, s96, s78\nv_mov_b32 v10, s96\ns_sub_u32 s88, s88, s78\nv_mov_b32 v11, s88")
    a("s_mov_b64 exec, 1\nglobal_store_dwordx4 v1, v[4:7], s[94:95]\nglobal_store_dwordx4 v1, v[8:11], s[94:95] offset:16")

JOB = 64

def swap23(a, src, dst, t0=8, t1=9):
    a(f"v_bfe_u32 v{t0}, v{src}, 2, 1\nv_bfe_u32 v{t1}, v{src}, 3, 1\nv_and_b32 v{dst}, 0x13, v{src}\nv_lshl_or_b32 v{dst}, v{t0}, 3, v{dst}\nv_lshl_or_b32 v{dst}, v{t1}, 2, v{dst}")

def image_job_setup(a, L, sW):
    a(f"s_and_b32 s58, s2, 31\ns_lshl_b32 s59, s{sW}, 5\ns_add_u32 s58, s58, s59\ns_lshr_b32 s59, s2, 5")
    a(f"s_mul_i32 s60, s58, 40960\ns_add_u32 s61, s58, 20\ns_mov_b32 s62, 8\ns_mov_b32 s63, 4\ns_mov_b32 s64, 0\ns_mov_b32 s65, 0")
    a(f"s_mov_b32 s68, s56\ns_mov_b32 s69, s57\ns_mov_b32 s70, {DF*D*2}")
    a(f"s_cmp_lt_u32 s58, 48\ns_cbranch_scc1 {L('job')}")
    a(f"s_mov_b32 s68, s44\ns_mov_b32 s69, s45\ns_mov_b32 s70, {D*D*2}")
    a("s_sub_u32 s61, s58, 48\ns_mul_i32 s60, s61, 51200\ns_lshr_b32 s65, s61, 3\ns_lshl_b32 s65, s65, 1\ns_add_u32 s61, s61, s65\ns_add_u32 s61, s61, 2\ns_mov_b32 s64, 4\ns_mov_b32 s65, 0")
    a(f"s_cmp_lt_u32 s58, 64\ns_cbranch_scc1 {L('job')}")
    a(f"s_sub_u32 s61, s58, 64\ns_mul_i32 s60, s61, {160*1280}\ns_lshr_b32 s65, s61, 1\ns_lshl_b32 s65, s65, 3\ns_add_u32 s61, s61, s65")
    a("s_mov_b32 s62, 40\ns_mov_b32 s63, 20\ns_mov_b32 s64, 0\ns_mov_b32 s65, 16")
    a.label(L("job"))
    a("s_and_b32 s69, s69, 0xffff\ns_mov_b32 s71, 0x20000\ns_mul_i32 s66, s59, 160\ns_add_u32 s60, s60, s66")
    a(f"s_mul_i32 s61, s61, 5120\ns_mul_i32 s66, s59, {IMG_CB}\ns_add_u32 s61, s61, s66\ns_add_u32 s61, s61, {WS_IMG}")
    a(f"s_cmp_lt_u32 s58, 68\ns_cselect_b32 s60, s60, {OOB}\ns_cselect_b32 s61, s61, {OOB}\ns_mov_b32 s66, 6554")
    for i in range(5):
        a(f"v_add_u32 v2, {64*i}, v0\nv_mul_u32_u24 v3, s66, v2\nv_lshrrev_b32 v3, 16, v3\nv_mul_u32_u24 v6, 10, v3\nv_sub_u32 v6, v2, v6")
        swap23(a, 3, 7)
        a("v_lshrrev_b32 v10, 3, v7\nv_mul_u32_u24 v10, s62, v10\nv_mad_u32_u24 v10, v9, s63, v10\nv_lshrrev_b32 v11, 4, v7\nv_mad_u32_u24 v10, v11, s64, v10")
        a(f"v_and_b32 v11, 3, v7\nv_add3_u32 v10, v10, v11, s65\nv_mul_u32_u24 v10, 1280, v10\nv_lshl_add_u32 v{JOB+20+i}, v6, 4, v10")

def image_job_load(a):
    for i in range(5):
        a(f"buffer_load_dwordx4 {vr(JOB+4*i, 4)}, v{JOB+20+i}, s[68:71], s60 offen")

def tr_lane_addr(a, stride, dst, base_sgpr):
    a("v_bfe_u32 v10, v0, 2, 2\nv_bfe_u32 v11, v0, 4, 1\nv_lshl_add_u32 v10, v11, 2, v10\nv_lshrrev_b32 v11, 5, v0\nv_lshl_add_u32 v10, v11, 4, v10")
    a(f"v_mul_u32_u24 v10, {stride}, v10\nv_and_b32 v11, 3, v0\nv_lshl_add_u32 v10, v11, 3, v10\nv_add_u32 v{dst}, s{base_sgpr}, v10")

def lds_transpose(a, regs, vwr, vrd, half):
    for i, r in enumerate(regs): a(f"ds_write_b128 v{vwr}, {vr(r,4)} offset:{i*1024}")
    a("s_waitcnt lgkmcnt(0)")
    for j, r in enumerate(regs):
        for h in range(2): a(f"ds_read_b64_tr_b16 {vr(r+2*h,2)}, v{vrd} offset:{h*half + j*32}")
    a("s_waitcnt lgkmcnt(0)")

def image_job_store(a, sW, sWS, scratch, flags):
    a(f"s_mul_i32 s66, s{sW}, 5120\ns_add_u32 s66, s66, {scratch}\nv_lshlrev_b32 v12, 4, v0\nv_add_u32 v13, s66, v12")
    tr_lane_addr(a, 160, 14, 66)
    a("s_waitcnt vmcnt(0)")
    lds_transpose(a, [JOB + 4 * i for i in range(5)], 13, 14, 1280)
    for j in range(4):
        a(f"buffer_store_dwordx4 {vr(JOB+4*j,4)}, v12, s[{sWS}:{sWS+3}], s61 offen offset:{j*1024} {flags}")
    a(f"s_add_u32 s61, s61, 4096\nbuffer_store_dwordx4 {vr(JOB+16,4)}, v12, s[{sWS}:{sWS+3}], s61 offen {flags}")

def gen_qkv(a, name="qkv_kernel", NS=4, stamp=False, st_flags="", stamp_wg=77, abl=(), first=2, pf=0, side_at=3, job_at=7, job_flags='sc1', code_pf='fused_kernel', job=True):
    SLOT = 32768
    ACC = 64
    acc = lambda j, i: ACC + (j * 2 + i) * 16
    FX = lambda p, i: 32 + p * 16 + i * 4
    FW = lambda p, j: 32 + p * 16 + 8 + j * 4
    XS, XQ, WC, ONE = 128, 132, 136, 140
    vXA = lambda i, s: 8 + i * 4 + s
    vWA = lambda j: 16 + j
    vDX = lambda k: 18 + k
    vDW = lambda k: 22 + k
    sX, sWq, sWS = 8, 12, 16
    sW, sRb, sCb, sMw, sNw, sC = 20, 21, 22, 23, 24, 25
    sSrcX, sSrcW, sM0, sDelta, sRd, sT = 26, 27, 28, 29, 30, 31
    sTau = (32, 33)
    sTj = (34, 35)
    L = lambda s: f"{name}_{s}"

    def reads(p, s):
        out = []
        for i in range(2):
            out.append(f"ds_read_b128 {vr(FX(p,i),4)}, v{vXA(i,s)}")
        for j in range(2):
            for h in range(2):
                out.append(f"ds_read_b64_tr_b16 {vr(FW(p,j)+2*h,2)}, v{vWA(j)} offset:{s*4096 + h*1024}")
        return out

    def params():
        for P in range(3):
            a(f"s_mul_i32 s{sT}, s{sCb}, 6\ns_add_u32 s{sT}, s{sT}, {2*P}")
            a(f"s_cmp_lt_u32 s{sT}, 32\ns_cselect_b32 s{44+P}, {f2u(QSCALE):#x}, 1.0")
            a(f"s_mov_b32 s39, {KV_HEAD}\ns_cselect_b32 s{48+P}, {Q_HEAD}, s39")
            a(f"s_cbranch_scc0 {L(f'pk{P}')}")
            for i in range(2):
                a(f"s_mul_i32 s{52+2*P+i}, s{sT}, {Q_HEAD}\ns_mul_i32 s39, s{sTau[i]}, 1280\ns_add_u32 s{52+2*P+i}, s{52+2*P+i}, s39")
                a(f"s_add_u32 s{58+2*P+i}, s{52+2*P+i}, 1024")
            a(f"s_branch {L(f'pd{P}')}")
            a.label(L(f"pk{P}"))
            a(f"s_mul_i32 s40, s{sT}, {KV_HEAD}\ns_add_u32 s40, s40, {(WS_KV - 32*KV_HEAD) & 0xffffffff}")
            a(f"s_cmp_lt_u32 s{sT}, 64\ns_cselect_b32 s40, s40, {OOB}")
            for i in range(2):
                a(f"s_lshr_b32 s39, s{sTau[i]}, 3\ns_mul_i32 s39, s39, {KV_CHUNK}\ns_add_u32 s39, s39, s40\ns_and_b32 s41, s{sTau[i]}, 7")
                a(f"s_lshl_b32 s42, s41, 10\ns_add_u32 s{52+2*P+i}, s39, s42")
                a(f"s_lshl_b32 s42, s41, 8\ns_add_u32 s39, s39, s42\ns_add_u32 s{58+2*P+i}, s39, {KV_K2}")
            a.label(L(f"pd{P}"))

    a(f".p2align 8\n.type {name},@function\n{name}:")
    a(f"s_cmp_ge_u32 s2, 256\ns_cbranch_scc1 {L('exit')}")
    a(f"s_load_dwordx4 s[4:7], s[0:1], {ARG_X}\ns_load_dwordx2 s[36:37], s[0:1], {ARG_WS}\ns_load_dwordx2 s[44:45], s[0:1], {ARG_WO}\ns_load_dwordx2 s[56:57], s[0:1], {ARG_WD}")
    stamp_begin(a, stamp)
    a(f"v_lshrrev_b32 v1, 6, v0\nv_and_b32 v0, 63, v0\nv_readfirstlane_b32 s{sW}, v1")
    a(f"s_bfe_u32 s{sRb}, s2, 0x20001\ns_lshl_b32 s{sRb}, s{sRb}, 2\ns_bfe_u32 s{sT}, s2, 0x20003\ns_add_u32 s{sRb}, s{sRb}, s{sT}")
    a(f"s_and_b32 s{sCb}, s2, 1\ns_lshl_b32 s{sCb}, s{sCb}, 3\ns_lshr_b32 s{sT}, s2, 5\ns_add_u32 s{sCb}, s{sCb}, s{sT}")
    a(f"s_cmp_lt_u32 s{sW}, 4\ns_cbranch_scc1 {L('compute')}")
    a(f"s_and_b32 s{sW}, s{sW}, 3")
    a(f"v_lshrrev_b32 v2, 3, v0\nv_mul_u32_u24 v2, 1280, v2\nv_lshrrev_b32 v3, 4, v0\nv_and_b32 v4, 7, v0\nv_xor_b32 v4, v4, v3")
    a(f"v_lshl_add_u32 v{vDX(0)}, v4, 4, v2\nv_xor_b32 v4, 4, v4\nv_lshl_add_u32 v{vDX(1)}, v4, 4, v2")
    a(f"v_add_u32 v{vDX(1)}, {8*1280-1024}, v{vDX(1)}\nv_add_u32 v{vDX(2)}, {2*(8*1280-1024)}, v{vDX(0)}\nv_add_u32 v{vDX(3)}, {2*(8*1280-1024)}, v{vDX(1)}")
    a(f"v_lshlrev_b32 v4, 2, v3\nv_sub_u32 v4, v0, v4\nv_and_b32 v4, 15, v4")
    a(f"s_lshl_b32 s{sSrcX}, s{sRb}, 2\ns_add_u32 s{sSrcX}, s{sSrcX}, s{sW}\ns_mul_i32 s{sSrcX}, s{sSrcX}, {32*1280}")
    a(f"s_mul_i32 s{sSrcW}, s{sW}, {16*3840}")
    a(f"s_cmp_ge_u32 s{sCb}, 11\ns_cbranch_scc1 {L('vsrc')}")
    a(f"v_lshrrev_b32 v5, 2, v4\nv_add_u32 v5, v4, v5\nv_bfe_u32 v6, v4, 1, 1\nv_add_u32 v5, v5, v6")
    a(f"v_mul_u32_u24 v6, 5, v4\nv_subrev_u32 v6, 58, v6\nv_min_i32 v6, 15, v6\nv_cmp_le_u32 vcc, 12, v4")
    a(f"s_mul_i32 s{sT}, s{sCb}, 240\ns_add_u32 s{sSrcW}, s{sSrcW}, s{sT}")
    a(f"v_cndmask_b32 v4, v5, v6, vcc\ns_branch {L('srcdone')}")
    a.label(L("vsrc"))
    a(f"s_lshl_b32 s{sT}, s{sCb}, 8\ns_add_u32 s{sSrcW}, s{sSrcW}, s{sT}\ns_sub_u32 s{sSrcW}, s{sSrcW}, {11*256-2560}")
    a.label(L("srcdone"))
    a(f"v_mul_u32_u24 v3, 3840, v3\nv_lshl_add_u32 v{vDW(0)}, v4, 4, v3")
    for k in range(1, 4):
        a(f"v_add_u32 v{vDW(k)}, {k*(4*3840-1024)}, v{vDW(0)}")
    a(f"s_lshl_b32 s{sM0}, s{sW}, 12")
    a("s_waitcnt lgkmcnt(0)")
    srd(a, sX, 4, S * D * 2)
    srd(a, sWq, 6, D * 3 * D * 2)
    issued = 0
    def issue():
        nonlocal issued
        a(f"s_add_u32 s{sT}, s{sM0}, {(issued % NS) * SLOT}\ns_mov_b32 m0, s{sT}\ns_add_u32 s{sT}, s{sT}, 16384")
        for k in range(4):
            a(f"buffer_load_dwordx4 v{vDX(k)}, s[{sX}:{sX+3}], s{sSrcX} offen offset:{k*1024} lds")
        a(f"s_mov_b32 m0, s{sT}\ns_add_u32 s{sSrcX}, s{sSrcX}, 128")
        for k in range(4):
            a(f"buffer_load_dwordx4 v{vDW(k)}, s[{sWq}:{sWq+3}], s{sSrcW} offen offset:{k*1024} lds")
        a(f"s_add_u32 s{sSrcW}, s{sSrcW}, {64*3840}")
        issued += 1
    extras = []
    for b in range(10):
        while issued < min(10, b + first if b == 0 else b - 1 + NS):
            issue()
        if b == side_at:
            srd(a, 40, 44, D * D * 2)
            a(f"s_lshl_b32 s46, s2, 2\ns_add_u32 s46, s46, s{sW}\ns_mul_i32 s47, s46, 1280\nv_cmp_gt_u32 vcc, 40, v0\nv_lshlrev_b32 v1, 5, v0\nv_mov_b32 v2, {OOB}")
            a(f"v_cndmask_b32 v1, v2, v1, vcc")
            a(f"buffer_load_dwordx4 v[32:35], v1, s[40:43], s47 offen\nbuffer_load_dwordx4 v[36:39], v1, s[40:43], s47 offen offset:16")
            extra = [2, issued]
            extras.append(extra)
        if b == 0 and job: image_job_setup(a, L, sW)
        if b == job_at and job:
            image_job_load(a)
            extras.append([5, issued])
        n = 8 * (issued - 1 - b) + sum(e[0] for e in extras if e[1] - 1 >= b + (0 if e[1] == 10 else 1))
        a(f"s_waitcnt vmcnt({n})\ns_barrier")
    srd(a, sWS, 36, WS_END)
    if code_pf:
        a(f"s_getpc_b64 s[72:73]\n{L('pc')}:\ns_add_u32 s72, s72, {code_pf} - {L('pc')}\ns_addc_u32 s73, s73, 0")
        a(f"s_lshr_b32 s74, s2, 3\ns_min_u32 s74, s74, ({code_pf}_codeend - {code_pf}) / 1024 - 1\ns_lshl_b32 s74, s74, 10\ns_add_u32 s72, s72, s74\ns_addc_u32 s73, s73, 0")
        a("v_lshlrev_b32 v90, 4, v0\nv_mov_b32 v91, s73\nv_add_co_u32 v90, vcc, s72, v90\ns_nop 1\nv_addc_co_u32 v91, vcc, 0, v91, vcc")
        a("global_load_dwordx4 v[92:95], v[90:91], off")
    if job: image_job_store(a, sW, sWS, NS * SLOT, job_flags)
    a(f"v_mov_b32 v2, 0\nv_lshlrev_b32 v3, 2, v0\ns_lshl_b32 s47, s{sW}, 15\ns_lshl_b32 s48, s2, 7\ns_add_u32 s47, s47, s48\ns_add_u32 s47, s47, {WS_FLG}")
    a("s_mov_b64 exec, 0xffffffff")
    a(f"buffer_store_dword v2, v3, s[{sWS}:{sWS+3}], s47 offen\ns_mov_b64 exec, -1")
    for r in range(8):
        a(f"v_lshlrev_b32 v{40+2*r}, 16, v{32+r}\nv_and_b32 v{41+2*r}, 0xffff0000, v{32+r}")
    for w_ in (8, 4, 2, 1):
        for r in range(w_): a(f"v_add_f32 v{40+r}, v{40+r}, v{40+w_+r}")
    a("s_nop 1")
    for sh in (1, 2, 4, 8):
        a(f"v_add_f32_dpp v40, v40, v40 row_shr:{sh} row_mask:0xf bank_mask:0xf bound_ctrl:1\ns_nop 1")
    a("v_readlane_b32 s48, v40, 15\nv_readlane_b32 s49, v40, 31\nv_readlane_b32 s50, v40, 47\ns_nop 1")
    a(f"v_mov_b32 v40, s48\nv_add_f32 v40, s49, v40\nv_add_f32 v40, s50, v40\nv_mul_f32 v40, {f2u(1/640):#x}, v40")
    a("v_cvt_pk_bf16_f32 v41, v40, v40\nv_and_b32 v42, 0xffff0000, v41\nv_sub_f32 v42, v40, v42\nv_cvt_pk_bf16_f32 v42, v42, v42")
    a("s_mul_i32 s48, s46, 3277\ns_lshr_b32 s48, s48, 16\ns_mul_i32 s49, s48, 20\ns_sub_u32 s49, s46, s49\ns_lshr_b32 s50, s48, 4\ns_mul_i32 s50, s50, 1280\ns_and_b32 s51, s48, 1")
    a(f"s_cmp_ge_u32 s49, 16\ns_cbranch_scc1 {L('tblrem')}")
    a("s_bfe_u32 s52, s48, 0x30001\ns_add_u32 s52, s52, 2\ns_lshl_b32 s52, s52, 7\ns_lshl_b32 s51, s51, 6\ns_add_u32 s52, s52, s51")
    a(f"s_lshr_b32 s51, s49, 3\ns_lshl_b32 s51, s51, 5\ns_add_u32 s52, s52, s51\ns_and_b32 s51, s49, 7\ns_branch {L('tbldone')}")
    a.label(L("tblrem"))
    a("s_bfe_u32 s52, s48, 0x10003\ns_lshl_b32 s52, s52, 7\ns_bfe_u32 s53, s48, 0x20001\ns_lshl_b32 s53, s53, 5\ns_add_u32 s52, s52, s53")
    a("s_lshl_b32 s51, s51, 2\ns_add_u32 s51, s51, s49\ns_sub_u32 s51, s51, 16")
    a.label(L("tbldone"))
    a(f"s_lshl_b32 s51, s51, 1\ns_add_u32 s52, s52, s51\ns_add_u32 s52, s52, s50\ns_add_u32 s52, s52, {WS_TBL}")
    a(f"s_cmp_lt_u32 s46, 640\ns_cselect_b32 s52, s52, {OOB}\ns_mov_b64 exec, 1")
    a(f"buffer_store_short v41, v2, s[{sWS}:{sWS+3}], s52 offen\nbuffer_store_short v42, v2, s[{sWS}:{sWS+3}], s52 offen offset:16")
    a("s_mov_b64 exec, -1\ns_barrier\ns_barrier\ns_barrier\ns_endpgm")
    a.label(L("compute"))
    if pf:
        a("s_waitcnt lgkmcnt(0)")
        srd(a, sX, 4, S * D * 2)
        srd(a, sWq, 6, D * 3 * D * 2)
        a(f"s_lshl_b32 s{sT}, s2, 2\ns_add_u32 s{sT}, s{sT}, s{sW}\ns_mul_i32 s39, s{sT}, 2560\ns_mul_i32 s40, s{sT}, 2400\nv_lshlrev_b32 v1, 4, v0")
        for k in range(3):
            a(f"buffer_load_dwordx4 {vr(144+8*k,4)}, v1, s[{sX}:{sX+3}], s39 offen offset:{k*1024}")
            a(f"buffer_load_dwordx4 {vr(148+8*k,4)}, v1, s[{sWq}:{sWq+3}], s40 offen offset:{k*1024}")
    a(f"s_lshr_b32 s{sMw}, s{sW}, 1\ns_and_b32 s{sNw}, s{sW}, 1")
    for i in range(2):
        a(f"s_xor_b32 s{sT}, s{sNw}, {i}\ns_lshl_b32 s{sTau[i]}, s{sMw}, 1\ns_add_u32 s{sTau[i]}, s{sTau[i]}, s{sT}")
        a(f"s_xor_b32 s{sT}, s{sMw}, {i}\ns_lshl_b32 s{sTj[i]}, s{sNw}, 1\ns_add_u32 s{sTj[i]}, s{sTj[i]}, s{sT}")
    a(f"v_and_b32 v2, 31, v0\nv_lshrrev_b32 v3, 5, v0")
    a(f"s_cmp_ge_u32 s{sCb}, 11\ns_cbranch_scc0 {L('norowperm')}")
    a(f"v_bfe_u32 v4, v0, 2, 1\nv_bfe_u32 v5, v0, 3, 1\nv_and_b32 v2, 0x13, v0\nv_lshl_or_b32 v2, v4, 3, v2\nv_lshl_or_b32 v2, v5, 2, v2")
    a.label(L("norowperm"))
    a(f"v_bfe_u32 v4, v2, 1, 3\nv_xor_b32 v4, v4, v3\nv_lshlrev_b32 v5, 7, v2")
    for s in range(4):
        a(f"v_xor_b32 v6, {2*s}, v4\nv_lshl_add_u32 v6, v6, 4, v5")
        for i in range(2):
            a(f"s_lshl_b32 s{sT}, s{sTau[i]}, 12\nv_add_u32 v{vXA(i,s)}, s{sT}, v6")
    a(f"v_bfe_u32 v4, v0, 2, 2\nv_lshl_add_u32 v5, v3, 3, v4\nv_lshlrev_b32 v5, 8, v5\nv_add_u32 v5, 16384, v5")
    a(f"v_bfe_u32 v6, v0, 4, 1\nv_lshlrev_b32 v6, 1, v6\nv_lshl_add_u32 v6, v4, 2, v6")
    a(f"v_and_b32 v26, 1, v0\nv_bfe_u32 v27, v0, 1, 1")
    for j in range(2):
        a(f"s_cmp_lt_u32 s{sTj[j]}, 3\ns_cselect_b32 s{sT}, 1, 0\ns_cmp_lt_u32 s{sCb}, 11\ns_cselect_b32 s{sT}, s{sT}, 0")
        a(f"s_cmp_eq_u32 s{sT}, 1\ns_cselect_b64 vcc, -1, 0\ns_lshl_b32 s{sT}, s{sTj[j]}, 2")
        a(f"v_cndmask_b32 v28, v27, v26, vcc\nv_cndmask_b32 v29, v26, v27, vcc")
        a(f"v_add3_u32 v28, v28, v6, s{sT}\nv_and_b32 v28, 15, v28\nv_lshl_add_u32 v28, v28, 4, v5\nv_lshl_add_u32 v{vWA(j)}, v29, 3, v28")
    for r in range(64): a(f"v_mov_b32 v{ACC+r}, 0")
    for r in range(12): a(f"v_mov_b32 v{XS+r}, 0")
    a(f"v_mov_b32 v{ONE}, 0x3f803f80\nv_mov_b32 v{ONE+1}, 0x3f803f80")
    for i in range(2):
        a(f"s_lshl_b32 s{sT}, s{sRb}, 2\ns_add_u32 s{sTau[i]}, s{sTau[i]}, s{sT}")
    a(f"s_mov_b32 s{sC}, 0\ns_mov_b32 s{sRd}, 0\ns_mov_b32 s38, {-(NS-1)*SLOT & 0xffffffff}")
    a("s_waitcnt lgkmcnt(0)")
    srd(a, sWS, 36, WS_END)
    a(f"s_cmp_ge_u32 s{sCb}, 11\ns_cbranch_scc1 {L('noparam')}")
    params()
    a.label(L("noparam"))
    a("s_barrier")
    stamp_at(a, stamp, 0)
    for r in reads(0, 0): a(r)
    a(f"s_cmp_ge_u32 s{sCb}, 11\ns_cbranch_scc1 {L('loopV')}")

    def small(d, x, y):
      if 'nosmall' not in abl and not ('noxs' in abl and d == XS): a(f"v_mfma_f32_4x4x4bf16_1k {vr(d,4)}, {vr(x,2)}, {vr(y,2)}, {vr(d,4)}")
    def loop(tag):
        a(".p2align 3")
        a.label(L("loop" + tag))
        for s in range(4):
            p = s % 2
            def big(j, i):
                x, w = vr(FX(p, i), 4), vr(FW(p, j), 4)
                if tag == "V": w, x = x, w
                a(f"v_mfma_f32_32x32x16_bf16 {vr(acc(j,i),16)}, {w}, {x}, {vr(acc(j,i),16)}")
            a("s_waitcnt lgkmcnt(0)")
            if s == 3:
                a("s_barrier")
            big(0, 0)
            if s == 3:
                a(f"s_add_u32 s{sRd}, s{sRd}, {SLOT}\ns_cmp_eq_u32 s{sRd}, {NS*SLOT}\ns_cselect_b32 s{sDelta}, s38, {SLOT}\ns_cselect_b32 s{sRd}, 0, s{sRd}")
                for r in [vXA(0,0), vXA(1,0), vWA(0), vWA(1)]:
                    a(f"v_add_u32 v{r}, s{sDelta}, v{r}")
            rd = reads(1 - p, (s + 1) % 4)
            if 'nods' in abl: rd = []
            for r in rd[:3]: a(r)
            small(XS, ONE, FX(p,0)); small(XQ, FX(p,0), FX(p,0)); small(WC, ONE, FW(p,0))
            big(0, 1)
            for r in rd[3:]: a(r)
            small(XS, ONE, FX(p,0)+2); small(XQ, FX(p,0)+2, FX(p,0)+2); small(WC, ONE, FW(p,0)+2)
            big(1, 0)
            if s == 3:
                for i in range(2):
                    for s2 in range(1, 4):
                        a(f"v_add_u32 v{vXA(i,s2)}, s{sDelta}, v{vXA(i,s2)}")
            big(1, 1)
        a(f"s_add_u32 s{sC}, s{sC}, 1\ns_cmp_lt_u32 s{sC}, 10\ns_cbranch_scc1 {L('loop'+tag)}")

    STAT = 0
    def stats():
        stamp_at(a, stamp, 1)
        a("s_waitcnt vmcnt(0) lgkmcnt(0)\ns_barrier")
        a(f"v_and_b32 v4, 3, v0\nv_cmp_eq_u32 vcc, 1, v4\nv_cmp_eq_u32 s[40:41], 2, v4\nv_cmp_eq_u32 s[42:43], 3, v4")
        a(f"s_and_b32 s{sT}, s{sTau[0]}, 3\ns_lshl_b32 s{sT}, s{sT}, 7\nv_lshl_add_u32 v6, v2, 2, s{sT}")
        a(f"v_cndmask_b32 v{XQ}, v{XQ}, v{XQ+1}, vcc\nv_cndmask_b32 v{XQ}, v{XQ}, v{XQ+2}, s[40:41]\nv_cndmask_b32 v{XQ}, v{XQ}, v{XQ+3}, s[42:43]")
        a(f"s_lshl_b32 s{sT}, s{sTj[0]}, 7\nv_and_b32 v7, 31, v0\nv_lshl_add_u32 v7, v7, 2, s{sT}")
        a(f"v_mov_b32 v{XQ+1}, v{XQ}\ns_nop 0")
        a(f"v_permlane32_swap_b32 v{XS}, v{XS+1}\nv_permlane32_swap_b32 v{WC}, v{WC+1}\nv_permlane32_swap_b32 v{XQ}, v{XQ+1}")
        a(f"v_add_f32 v{XS}, v{XS}, v{XS+1}\nv_add_f32 v{WC}, v{WC}, v{WC+1}\nv_add_f32 v{XQ}, v{XQ}, v{XQ+1}")
        a(f"v_mul_f32 v{XS}, {f2u(1/640):#x}, v{XS}\nv_mul_f32 v{XQ}, {f2u(1/640):#x}, v{XQ}")
        a(f"v_fma_f32 v{XQ}, -v{XS}, v{XS}, v{XQ}\nv_max_f32 v{XQ}, 0, v{XQ}\nv_add_f32 v{XQ}, {f2u(1e-5):#x}, v{XQ}\nv_rsq_f32 v{XQ}, v{XQ}")
        a(f"ds_write_b32 v7, v{WC} offset:{STAT+1024}")
        a(f"s_lshl_b32 s39, s{sRb}, 9\ns_add_u32 s39, s39, {WS_MUX}\ns_cmp_eq_u32 s{sCb}, 0\ns_cselect_b32 s39, s39, {OOB}")
        a(f"buffer_store_dword v{XS}, v6, s[{sWS}:{sWS+3}], s39 offen")
        a(f"v_mul_f32 v{XS}, v{XS}, v{XQ}")
        a(f"ds_write_b32 v6, v{XQ} offset:{STAT}\nds_write_b32 v6, v{XS} offset:{STAT+512}")
        a("s_waitcnt lgkmcnt(0)\ns_barrier")
        stamp_at(a, stamp, 2)

    loop("Q")
    stats()
    CS = 144
    RS, MR = (26, 28), (27, 29)
    for i in range(2):
        a(f"s_and_b32 s{sT}, s{sTau[i]}, 3\ns_lshl_b32 s{sT}, s{sT}, 7\nv_lshl_add_u32 v6, v2, 2, s{sT}")
        a(f"ds_read_b32 v{RS[i]}, v6 offset:{STAT}\nds_read_b32 v{MR[i]}, v6 offset:{STAT+512}")
    for j in range(2):
        a(f"s_lshl_b32 s{sT}, s{sTj[j]}, 7\nv_lshl_add_u32 v7, v3, 4, s{sT}")
        for g in range(4):
            a(f"ds_read_b128 {vr(CS+16*j+4*g,4)}, v7 offset:{STAT+1024+32*g}")
    a(f"v_lshlrev_b32 v4, 4, v0\nv_lshlrev_b32 v5, 3, v2")
    a("s_waitcnt lgkmcnt(0)")
    for j in range(2):
        a(f"s_cmp_eq_u32 s{sTj[j]}, 1\ns_cselect_b32 s64, s45, s44\ns_cselect_b32 s68, s49, s48\ns_cselect_b32 s69, s54, s52\ns_cselect_b32 s70, s55, s53")
        a(f"s_cmp_eq_u32 s{sTj[j]}, 2\ns_cselect_b32 s64, s46, s64\ns_cselect_b32 s68, s50, s68\ns_cselect_b32 s69, s56, s69\ns_cselect_b32 s70, s57, s70")
        a(f"s_cmp_eq_u32 s{sTj[j]}, 3\ns_cselect_b32 s65, s45, s64\ns_cselect_b32 s66, s46, s64")
        for i in range(2):
            A_ = acc(j, i)
            a(f"v_mul_f32 v30, s64, v{RS[i]}\nv_mul_f32 v31, s64, v{MR[i]}")
            for g in range(4):
                if g in (1, 2):
                    a(f"v_mul_f32 v30, s{64+g}, v{RS[i]}\nv_mul_f32 v31, s{64+g}, v{MR[i]}")
                for r in (0, 2):
                    q = A_ + 4 * g + r
                    a(f"v_pk_mul_f32 {vr(q,2)}, {vr(q,2)}, v[30:31] op_sel_hi:[1,0]")
                    a(f"v_pk_fma_f32 {vr(q,2)}, {vr(CS+16*j+4*g+r,2)}, v[30:31], {vr(q,2)} op_sel:[0,1,0] op_sel_hi:[1,1,1] neg_lo:[0,1,0] neg_hi:[0,1,0]")
            for r in range(8):
                a(f"v_cvt_pk_bf16_f32 v{A_+r}, v{A_+2*r}, v{A_+2*r+1}")
        a(f"s_cbranch_scc1 {L(f'rem{j}')}")
        for i in range(2):
            A_ = acc(j, i)
            a(f"buffer_store_dwordx4 {vr(A_,4)}, v4, s[{sWS}:{sWS+3}], s{69+i} offen {st_flags}")
            a(f"s_add_u32 s{69+i}, s{69+i}, s68")
            a(f"buffer_store_dwordx4 {vr(A_+4,4)}, v4, s[{sWS}:{sWS+3}], s{69+i} offen {st_flags}")
        a(f"s_branch {L(f'std{j}')}")
        a.label(L(f"rem{j}"))
        for g in range(3):
            a(f"v_mad_u32_u24 v6, v3, s{48+g}, v5")
            for i in range(2):
                a(f"buffer_store_dwordx2 {vr(acc(j,i)+2*g,2)}, v6, s[{sWS}:{sWS+3}], s{58+2*g+i} offen {st_flags}")
        a.label(L(f"std{j}"))
    a(f"s_branch {L('done')}")

    loop("V")
    stats()
    RSV, MRV, CSV = 144, 176, (26, 28)
    for i in range(2):
        a(f"s_and_b32 s{sT}, s{sTau[i]}, 3\ns_lshl_b32 s{sT}, s{sT}, 7\nv_lshl_add_u32 v6, v3, 5, s{sT}")
        for q in range(4):
            off = (q // 2) * 64 + (q % 2) * 16
            a(f"ds_read_b128 {vr(RSV+16*i+4*q,4)}, v6 offset:{STAT+off}\nds_read_b128 {vr(MRV+16*i+4*q,4)}, v6 offset:{STAT+512+off}")
        if i == 0: a("s_waitcnt lgkmcnt(4)")
    a(f"v_and_b32 v2, 31, v0\ns_mov_b32 s40, 3277\ns_mov_b32 s41, {KV_HEAD - 640}")
    for j in range(2):
        a(f"s_lshl_b32 s{sT}, s{sTj[j]}, 7\nv_lshl_add_u32 v7, v2, 2, s{sT}\nds_read_b32 v{CSV[j]}, v7 offset:{STAT+1024}")
        a(f"s_lshl_b32 s39, s{sCb}, 2\ns_add_u32 s39, s39, s{sTj[j]}\ns_sub_u32 s39, s39, 44\ns_lshl_b32 s39, s39, 5")
        a(f"v_add_u32 v4, s39, v2\nv_mul_u32_u24 v5, s40, v4\nv_lshrrev_b32 v5, 16, v5")
        a(f"v_mul_u32_u24 v6, 20, v5\nv_sub_u32 v6, v4, v6\nv_bfe_u32 v6, v6, 3, 1\nv_xor_b32 v6, v6, v3")
        a(f"v_lshlrev_b32 v4, 5, v4\nv_lshl_add_u32 v4, v6, 4, v4\nv_mad_u32_u24 v{30+j}, v5, s41, v4")
    for i in range(2):
        a(f"s_lshr_b32 s39, s{sTau[i]}, 3\ns_mul_i32 s39, s39, {KV_CHUNK}\ns_and_b32 s42, s{sTau[i]}, 7\ns_mul_i32 s42, s42, 1280")
        a(f"s_add_u32 s39, s39, s42\ns_add_u32 s{44+i}, s39, {WS_KV + KV_V}")
    a("s_waitcnt lgkmcnt(0)")
    for j in range(2):
        for i in range(2):
            A_ = acc(j, i)
            for r in range(0, 16, 2):
                a(f"v_pk_mul_f32 {vr(A_+r,2)}, {vr(A_+r,2)}, {vr(RSV+16*i+r,2)}")
                a(f"v_pk_fma_f32 {vr(A_+r,2)}, {vr(MRV+16*i+r,2)}, {vr(CSV[j],2)}, {vr(A_+r,2)} op_sel_hi:[1,0,1] neg_lo:[1,0,0] neg_hi:[1,0,0]")
            for r in range(8):
                a(f"v_cvt_pk_bf16_f32 v{A_+r}, v{A_+2*r}, v{A_+2*r+1}")
            a(f"buffer_store_dwordx4 {vr(A_,4)}, v{30+j}, s[{sWS}:{sWS+3}], s{44+i} offen {st_flags}")
            a(f"buffer_store_dwordx4 {vr(A_+4,4)}, v{30+j}, s[{sWS}:{sWS+3}], s{44+i} offen offset:640 {st_flags}")
    a.label(L("done"))
    stamp_end(a, stamp, L("exit"), stamp_wg)
    a.label(L("exit"))
    a("s_endpgm")
    return dict(name=name, grid=256, block=512, lds=NS * SLOT + 20480, nvgpr=208, nstamp=4)
```

```python
S, D, H, DH, DF = 2048, 640, 32, 20, 1536
WS_Q = 0
Q_HEAD = 64 * 1280
WS_KV = WS_Q + H * Q_HEAD
KV_CHUNK = 20480
KV_K2, KV_V = 8192, 10240
KV_HEAD = 8 * KV_CHUNK
WS_O = WS_KV + H * KV_HEAD
O_TILE = 32 * 1280
WS_H = WS_O + 64 * O_TILE
H_TILE = 40 * 1024
WS_ST = WS_H + 64 * H_TILE
ST_BLK = 2048 * 8
WS_FF = WS_ST + 8 * ST_BLK
FF_TILE = 96 * 1024
WS_MUX = WS_FF + 64 * FF_TILE
WS_TBL = WS_MUX + 2048 * 4
WS_FLG = WS_TBL + 4096
WS_IMG = WS_FLG + 5 * 256 * 128
IMG_CB = 68 * 5120
WS_END = WS_IMG + 8 * IMG_CB
WS_TL = 200 << 20
WS_BYTES = 268435456
ARG_X, ARG_WQKV, ARG_WO, ARG_WG, ARG_WU, ARG_WD, ARG_OUT, ARG_DBG, ARG_WS = 0, 8, 16, 32, 40, 48, 56, 64, 72

def main_dims(head):
    return list(range(16)) if head % 2 == 0 else list(range(4, 20))

def rem_dims(head):
    return list(range(16, 20)) if head % 2 == 0 else list(range(4))
```

```python
import sys, functools
sys.path.insert(0, "tools")
from build import *
from k_qkv import gen_qkv
from k_attn2 import gen_attn2 as gen_attn
from k_proj import gen_proj
from k_gate import gen_gate
from k_fused import gen_fused
def gens5(stamp=False, **kw):
    P = functools.partial
    if stamp == 'tl':
        g = gens5(False, **kw)
        return [P(f, stamp=('tl', n)) for n, f in enumerate(g)]
    return [P(gen_qkv, stamp=stamp, **kw.get('qkv', {})), P(gen_attn, stamp=stamp, **kw.get('attn', {})), P(gen_proj, mode="wo", stamp=stamp, **kw.get('wo', {})),
            P(gen_gate, stamp=stamp, **kw.get('gate', {})), P(gen_proj, mode="down", stamp=stamp, **kw.get('down', {}))]
def gens(stamp=False, **kw):
    P = functools.partial
    g = [P(gen_fused, **kw.get('fused', {}))]
    if stamp == 'tl': g = [P(f, stamp=('tl', n)) for n, f in enumerate(g)]
    return g
if __name__ == "__main__":
    from localcheck import localcheck
    t, i = assemble_file(gens(), listform=False)
    localcheck(t, "all")
    open("sequential_preLN__mha_block__glu_gated_geglu__prompt.s", "w").write(t)
    print(len(t), "bytes")
```

```python
from asmlib import *
from layout import *

HEADER = open("sequential_preLN__mha_block__glu_gated_geglu__prompt.s.ref").read().split("; Override")[0]

def assemble_file(gens, listform=True):
    a = Asm()
    infos = [g(a) for g in gens]
    body = a.text()
    bad = check_text(body)
    for b in bad: print("HAZARD", b)
    assert not bad, "hazards found"
    out = HEADER
    single = len(infos) == 1 and infos[0]['name'].startswith("sequential_") and not listform
    if single:
        i = infos[0]
        out += f"; @launch grid=({i['grid']},1,1) block=({i['block']},1,1) lds={i['lds']}\n"
    for i in ([] if single else infos):
        out += f"; @launch kernel={i['name']} grid=({i['grid']},1,1) block=({i['block']},1,1) lds={i['lds']}\n"
    out += '.amdgcn_target "amdgcn-amd-amdhsa--gfx950"\n.text\n'
    seen = []
    for i in infos:
        if i['name'] not in seen:
            out += f".globl {i['name']}\n"; seen.append(i['name'])
    out += body
    out += '.section .rodata,"a"\n'
    seen = []
    for i in infos:
        if i['name'] in seen: continue
        seen.append(i['name'])
        out += ".p2align 6\n" + kernel_descriptor(i['name'], i['nvgpr'], i.get('accum'))
    return out, infos
```

```python
from asmlib import *
from layout import *
from k_attn import srd
from k_qkv import stamp_begin, stamp_at, stamp_end

SC = KV_CHUNK

class Attn:
    O, NEGM, SB = 16, 32, (48, 64, 112, 128)
    Q1, Q2, K1, K2 = 80, (84, 86), 88, 92
    V = ((96, 100), (104, 108))
    vL16, vK1, vK2, vV, vIDX, vL8 = 1, 2, 3, 4, 6, 9
    sW, sHead, sI, sKV, sTmp, sQ, sSrc, sDst, sMaskV = 20, 21, 22, 25, 27, 28, 29, 30, 34
    WS = 8

    def __init__(self, a, name, stamp, order, swap_at, pf, st_flags, abl, nld, bar_at, park):
        self.__dict__.update(locals())
        self.L = lambda s: f"{name}_{s}"

    def qk1(s, dst, c): s.a(f"v_mfma_f32_32x32x16_bf16 {vr(dst,16)}, {vr(s.K1,4)}, {vr(s.Q1,4)}, {c}")
    def qk2(s, dst, par): s.a(f"v_mfma_f32_32x32x8bf16_1k {vr(dst,16)}, {vr(s.K2,2)}, {vr(s.Q2[par],2)}, {vr(dst,16)}")
    def pv(s, vf, p): s.a(f"v_smfmac_f32_32x32x32_bf16 {vr(s.O,16)}, {vr(vf,4)}, {vr(p,8)}, v{s.vIDX}")
    def rdK1(s, n): s.a(f"ds_read_b128 {vr(s.K1,4)}, v{s.vK1} offset:{(n // 8) * SC + (n % 8) * 1024}")
    def rdK2(s, n): s.a(f"ds_read_b64 {vr(s.K2,2)}, v{s.vK2} offset:{(n // 8) * SC + KV_K2 + (n % 8) * 256}")
    def rdV(s, n):
        s.a(f"s_mov_b64 exec, s[{s.sMaskV}:{s.sMaskV+1}]")
        for g in range(2):
            s.a(f"ds_read_b128 {vr(s.V[n % 2][g], 4)}, v{s.vV} offset:{(n // 8) * SC + ((n % 8) * 2 + g) * 640}")
        s.a("s_mov_b64 exec, -1")

    def dma5(s, cnt=5):
        a = s.a
        for j in range(cnt):
            a(f"s_mov_b32 m0, s{s.sDst}\ns_add_u32 s{s.sDst}, s{s.sDst}, 8192")
            a(f"buffer_load_dwordx4 v{s.vL16}, s[{s.WS}:{s.WS+3}], s{s.sSrc} offen lds")
            a(f"s_add_u32 s{s.sSrc}, s{s.sSrc}, 8192")

    def prefetch(s):
        a = s.a
        for r, (base, size) in enumerate(((60, D * D * 2), (64, D * DF * 2), (66, D * DF * 2), (62, D * DF * 2))):
            srd(a, 12, base, size)
            a(f"s_mul_i32 s59, s58, {size // 2048}")
            a(f"buffer_load_dwordx4 {vr(112 + 4 * r, 4)}, v{s.vL16}, s[12:15], s59 offen")

    def ids(s):
        a = s.a
        a(f"s_and_b32 s{s.sHead}, s2, 7\ns_lshl_b32 s{s.sHead}, s{s.sHead}, 2\ns_bfe_u32 s{s.sTmp}, s2, 0x20003\ns_add_u32 s{s.sHead}, s{s.sHead}, s{s.sTmp}")
        a(f"s_mul_i32 s{s.sKV}, s{s.sHead}, {KV_HEAD}\ns_add_u32 s{s.sKV}, s{s.sKV}, {WS_KV}")

    def setup(s):
        a = s.a
        a(f"s_lshr_b32 s{s.sQ}, s2, 5\ns_lshl_b32 s{s.sQ}, s{s.sQ}, 3\ns_add_u32 s{s.sQ}, s{s.sQ}, s{s.sW}")
        a(f"s_mul_i32 s33, s{s.sHead}, {Q_HEAD}\ns_mul_i32 s32, s{s.sQ}, 1280\ns_add_u32 s33, s33, s32")
        a(f"v_and_b32 v7, 31, v0\nv_lshlrev_b32 v{s.vL8}, 3, v7\nv_lshlrev_b32 v{s.vL16}, 4, v0")
        a(f"s_add_u32 s32, s{s.sKV}, {KV_K2}\nv_lshlrev_b32 v{s.vK2}, 3, v0")
        a(f"v_mov_b32 v{s.vK1}, v{s.vL16}")
        a(f"v_lshrrev_b32 v11, 5, v0\nv_bfe_u32 v12, v0, 2, 1\nv_bfe_u32 v13, v0, 3, 1")
        a(f"v_and_b32 v10, 0x13, v0\nv_lshl_or_b32 v10, v12, 3, v10\nv_lshl_or_b32 v10, v13, 2, v10\nv_xor_b32 v12, v11, v12")
        a(f"v_lshlrev_b32 v10, 5, v10\nv_lshl_add_u32 v10, v12, 4, v10\nv_add_u32 v{s.vV}, {KV_V}, v10")
        a(f"s_mov_b32 s{s.sMaskV}, 0xfffff\ns_mov_b32 s{s.sMaskV+1}, 0xfffff\ns_mov_b32 s36, 0x1100000\ns_mov_b32 s37, 0x1100000")
        a(f"v_mov_b32 v{s.vIDX}, 0xdddddddd\nv_mov_b32 v10, 0x3f803f80\nv_cndmask_b32 v10, 0, v10, s[36:37]")

    def setup2(s):
        a = s.a
        for b in (96, 100, 104, 108):
            for r in range(4): a(f"v_mov_b32 v{b+r}, v10")
        for r in range(16): a(f"v_mov_b32 v{s.O+r}, 0")
        for r in range(8, 16): a(f"v_mov_b32 v{s.SB[3]+r}, 0")

    def first_loads(s, fl=""):
        a = s.a
        a(f"buffer_load_dwordx4 {vr(s.Q1,4)}, v{s.vL16}, s[{s.WS}:{s.WS+3}], s33 offen {fl}")
        a(f"buffer_load_dwordx2 {vr(s.Q2[0],2)}, v{s.vL8}, s[{s.WS}:{s.WS+3}], s33 offen offset:1024 {fl}")
        a(f"buffer_load_dwordx4 {vr(s.K1,4)}, v{s.vL16}, s[{s.WS}:{s.WS+3}], s{s.sKV} offen {fl}")
        a(f"buffer_load_dwordx2 {vr(s.K2,2)}, v{s.vK2}, s[{s.WS}:{s.WS+3}], s32 offen {fl}")

    def prologue(s):
        a, L = s.a, s.L
        a(f"v_lshrrev_b32 v7, 6, v0\nv_and_b32 v0, 63, v0\nv_readfirstlane_b32 s{s.sW}, v7\nv_lshlrev_b32 v{s.vL16}, 4, v0")
        s.ids()
        a(f"s_cmp_ge_u32 s{s.sW}, 8\ns_cbranch_scc1 {L('loader')}")
        s.setup()
        a("s_waitcnt lgkmcnt(0)")
        srd(a, s.WS, 4, WS_END)
        s.first_loads()
        s.setup2()
        s.prologue2()

    def prologue2(s):
        a, L = s.a, s.L
        a("v_cmp_gt_u32 vcc, 32, v0\ns_nop 0")
        a("s_waitcnt vmcnt(0)")
        Q2 = s.Q2
        a(f"v_cndmask_b32 v{Q2[1]}, v{Q2[0]}, 0, vcc\nv_cndmask_b32 v{Q2[1]+1}, v{Q2[0]+1}, 0, vcc")
        a(f"v_cndmask_b32 v{Q2[0]}, 0, v{Q2[0]}, vcc\nv_cndmask_b32 v{Q2[0]+1}, 0, v{Q2[0]+1}, vcc\ns_nop 0")
        A_ = s.SB[0]
        s.qk1(A_, "0"); s.qk2(A_, 0)
        a("s_nop 11")
        a(f"v_max3_f32 v10, v{A_}, v{A_+1}, v{A_+2}\nv_max3_f32 v11, v{A_+3}, v{A_+4}, v{A_+5}")
        for r in range(6, 14, 4):
            a(f"v_max3_f32 v10, v10, v{A_+r}, v{A_+r+1}\nv_max3_f32 v11, v11, v{A_+r+2}, v{A_+r+3}")
        a(f"v_max3_f32 v10, v10, v{A_+14}, v{A_+15}\nv_max_f32 v10, v10, v11\nv_mov_b32 v11, v10\ns_nop 1\nv_permlane32_swap_b32 v10, v11")
        a("v_max_f32 v10, v10, v11")
        for r in range(16): a(f"v_sub_f32 v{s.NEGM+r}, 0, v10")
        for r in range(16): a(f"v_sub_f32 v{A_+r}, v{A_+r}, v10")
        a("s_barrier")
        s.rdK1(1); s.rdV(0)
        a("s_waitcnt lgkmcnt(2)")
        s.qk1(s.SB[1], vr(s.NEGM, 16)); s.rdK1(2)
        s.qk2(s.SB[1], 1); s.rdK2(2)
        a(f"s_mov_b32 s{s.sI}, 0")
        if s.swap_at is not None:
            a(f"s_cmp_lt_u32 s{s.sW}, 4\ns_cselect_b32 s38, 0, {s.swap_at}\ns_lshl_b32 s39, s38, 1\ns_xor_b32 s39, s39, s38\ns_bitcmp0_b32 s38, 0\ns_cbranch_scc1 {L('prio')}\ns_setprio 1")
            a.label(L("prio"))

    def loop(s):
        a, L, V = s.a, s.L, s.V
        a(".p2align 3")
        a.label(L("loop"))
        for n in range(8):
            A_, B_, P_ = s.SB[n % 4], s.SB[(n + 2) % 4], s.SB[(n + 3) % 4]
            e = lambda *rs: [a(f"v_exp_f32 v{A_+r}, v{A_+r}") for r in rs]
            e(0, 1)
            s.pv(V[(n + 1) % 2][1], P_ + 8)
            if s.order == 0: s.rdV(n + 1)
            e(2, 3, 4, 5)
            a("s_waitcnt lgkmcnt(2)" if s.order == 0 else "s_waitcnt lgkmcnt(0)")
            s.qk1(B_, vr(s.NEGM, 16))
            if n == s.bar_at[1] and 'nobar' not in s.abl:
                a(f"s_bitcmp1_b32 {(1 << s.bar_at[0]) | getattr(s, 'bar_extra', 0)}, s{s.sI}\ns_cbranch_scc1 {L('bar')}")
                a.label(L("barback"))
            s.rdK1(n + 3)
            e(6, 7, 8, 9)
            s.qk2(B_, n % 2)
            if n % 2 == 1: s.rdK2(n + 3)
            if s.order == 1: s.rdV(n + 1)
            e(10, 11, 12, 13)
            s.pv(V[n % 2][0], A_)
            if n == 7:
                for r in (s.vK1, s.vK2, s.vV): a(f"v_add_u32 v{r}, {SC}, v{r}")
            e(14, 15)
        a(f"s_add_u32 s{s.sI}, s{s.sI}, 1")
        if s.swap_at is not None:
            a(f"s_bitcmp1_b32 s39, s{s.sI}\ns_cbranch_scc1 {L('flip')}")
            a.label(L("flipback"))
        a(f"s_cmp_eq_u32 s{s.sI}, 8\ns_cbranch_scc0 {L('loop')}")
        s.pv(V[1][1], s.SB[3] + 8)

    def rare(s):
        a, L = s.a, s.L
        if 'nobar' not in s.abl:
            a.label(L("bar"))
            if getattr(s, "bar_stamps", False):
                a(f"s_cmp_eq_u32 s{s.sI}, {s.bar_at[0]}\ns_cbranch_scc0 {L('bar2')}")
                a(f"s_memtime s[84:85]\ns_barrier\ns_memtime s[86:87]\ns_branch {L('barback')}")
                a.label(L("bar2"))
                a(f"s_memtime s[88:89]\ns_barrier\ns_memtime s[90:91]\ns_branch {L('barback')}")
            else:
                a(f"s_barrier\ns_branch {L('barback')}")
        if hasattr(s, "loader_entry"):
            s.loader_entry()
        else:
            a.label(L("loader"))
            a(f"s_sub_u32 s{s.sW}, s{s.sW}, 8")
            if hasattr(s, "loader_setup"): s.loader_setup()
            a("s_waitcnt lgkmcnt(0)")
            srd(a, s.WS, 4, WS_END)
        a(f"s_lshl_b32 s{s.sDst}, s{s.sW}, 10\ns_add_u32 s{s.sSrc}, s{s.sKV}, s{s.sDst}")
        per = 160 // s.nld - getattr(s, 'hold_back', 0)
        first = (20 if s.bar_at < (0, 6) else 40) // s.nld
        def piece():
            a(f"s_mov_b32 m0, s{s.sDst}\ns_add_u32 s{s.sDst}, s{s.sDst}, {1024 * s.nld}")
            a(f"buffer_load_dwordx4 v{s.vL16}, s[{s.WS}:{s.WS+3}], s{s.sSrc} offen {getattr(s, 'ld_flags', '')} lds")
            a(f"s_add_u32 s{s.sSrc}, s{s.sSrc}, {1024 * s.nld}")
        a(f"s_mov_b32 s{s.sI}, {first}")
        a.label(L("ld0"))
        piece()
        a(f"s_sub_u32 s{s.sI}, s{s.sI}, 1\ns_cmp_lg_u32 s{s.sI}, 0\ns_cbranch_scc1 {L('ld0')}")
        for k in range(4): piece()
        a(f"s_waitcnt vmcnt(4)\ns_barrier\ns_mov_b32 s{s.sI}, {per - first - 4}")
        a.label(L("ld1"))
        piece()
        a(f"s_waitcnt vmcnt(40)\ns_sub_u32 s{s.sI}, s{s.sI}, 1\ns_cmp_lg_u32 s{s.sI}, 0\ns_cbranch_scc1 {L('ld1')}")
        npf = 0
        if s.pf:
            for k in range(8 // s.nld):
                a(f"s_lshl_b32 s58, s2, 3\ns_mul_i32 s59, s{s.sW}, {8 // s.nld}\ns_add_u32 s58, s58, s59\ns_add_u32 s58, s58, {k}")
                s.prefetch(); npf += 4
        if hasattr(s, "loader_early"): npf += s.loader_early()
        if 'nobar' not in s.abl: a(f"s_waitcnt vmcnt({npf + getattr(s, 'first_bar_slack', 0)})\ns_barrier")
        if hasattr(s, "loader_tail"):
            s.loader_tail()
        else:
            if s.park: a("s_barrier")
            a("s_endpgm")
        if s.swap_at is not None:
            a.label(L("flip"))
            a(f"s_setprio 0\ns_bitcmp0_b32 s38, s{s.sI}\ns_cbranch_scc1 {L('flipback')}\ns_setprio 1\ns_branch {L('flipback')}")

    def epilogue(s):
        a, L, O = s.a, s.L, s.O
        a(f"s_mul_i32 s33, s{s.sQ}, {O_TILE}\ns_mul_i32 s32, s{s.sHead}, 1280\ns_add_u32 s33, s33, s32\ns_add_u32 s33, s33, {WS_O}")
        a("s_mov_b32 s36, 0x53800000\nv_cmp_gt_u32 s[38:39], 32, v0\ns_nop 5")
        a(f"v_cndmask_b32 v12, v{O+8}, v{O+12}, s[38:39]")
        a(f"v_mul_f32 v10, 0, v{O}\nv_mul_f32 v11, 0, v{O+1}")
        for r in range(2, 12, 2):
            a(f"v_fma_f32 v10, v{O+r}, 0, v10\nv_fma_f32 v11, v{O+r+1}, 0, v11")
        a(f"v_add_f32 v10, v10, v11\nv_add_f32 v10, v10, v12\nv_cmp_nge_f32 vcc, s36, v10\nv_rcp_f32 v10, v12\ns_cbranch_vccnz {L('slow')}")
        a.label(L("finish"))
        for r in range(0, 12, 2):
            a(f"v_pk_mul_f32 {vr(O+r,2)}, {vr(O+r,2)}, v[10:11] op_sel_hi:[1,0]")
        for r in range(6):
            a(f"v_cvt_pk_bf16_f32 v{O+r}, v{O+2*r}, v{O+2*r+1}")
        a(f"buffer_store_dwordx4 {vr(O,4)}, v{s.vL16}, s[{s.WS}:{s.WS+3}], s33 offen {s.st_flags}")
        a("s_mov_b64 exec, 0xffffffff")
        a(f"buffer_store_dwordx2 {vr(O+4,2)}, v{s.vL8}, s[{s.WS}:{s.WS+3}], s33 offen offset:1024 {s.st_flags}")
        a("s_mov_b64 exec, -1")

    def slow(s):
        a, L, V, O, WS = s.a, s.L, s.V, s.O, s.WS
        A_ = s.SB[0]
        a.label(L("slow"))
        a(f"v_subrev_u32 v{s.vV}, {8 * SC}, v{s.vV}\nv_mov_b32 v15, 0xff7fffff\ns_mov_b32 s37, 0")
        a.label(L("slow_pass"))
        a(f"s_mov_b32 s{s.sI}, 0")
        a.label(L("slow_tile"))
        a(f"s_lshr_b32 s40, s{s.sI}, 3\ns_mul_i32 s40, s40, {KV_CHUNK}\ns_add_u32 s40, s40, s{s.sKV}\ns_and_b32 s41, s{s.sI}, 7")
        a(f"s_lshl_b32 s48, s41, 10\ns_add_u32 s48, s48, s40")
        a(f"s_lshl_b32 s49, s41, 8\ns_add_u32 s49, s49, s40\ns_add_u32 s49, s49, {KV_K2}")
        a(f"s_mul_i32 s50, s41, 1280\ns_add_u32 s50, s50, s40")
        a(f"buffer_load_dwordx4 {vr(s.K1,4)}, v{s.vL16}, s[{WS}:{WS+3}], s48 offen {getattr(s, 'ld_flags', '')}")
        a(f"buffer_load_dwordx2 {vr(s.K2,2)}, v{s.vL8}, s[{WS}:{WS+3}], s49 offen {getattr(s, 'ld_flags', '')}")
        a(f"s_cmp_eq_u32 s37, 0\ns_cbranch_scc0 {L('slow_pv')}")
        a("s_waitcnt vmcnt(0)")
        s.qk1(A_, "0"); s.qk2(A_, 0)
        a("s_nop 11")
        for r in range(0, 16, 2):
            a(f"v_max3_f32 v15, v15, v{A_+r}, v{A_+r+1}")
        a(f"s_branch {L('slow_next')}")
        a.label(L("slow_pv"))
        a(f"s_mov_b64 exec, s[{s.sMaskV}:{s.sMaskV+1}]")
        for g in range(2):
            a(f"buffer_load_dwordx4 {vr(V[0][g],4)}, v{s.vV}, s[{WS}:{WS+3}], s50 offen offset:{g*640} {getattr(s, 'ld_flags', '')}")
        a("s_mov_b64 exec, -1\ns_waitcnt vmcnt(0)")
        s.qk1(A_, vr(s.NEGM, 16)); s.qk2(A_, 0)
        a("s_nop 11")
        for r in range(16): a(f"v_exp_f32 v{A_+r}, v{A_+r}")
        a("s_nop 1")
        s.pv(V[0][0], A_); s.pv(V[0][1], A_ + 8)
        a("s_nop 3")
        a.label(L("slow_next"))
        a(f"s_add_u32 s{s.sI}, s{s.sI}, 1\ns_cmp_lt_u32 s{s.sI}, 64\ns_cbranch_scc1 {L('slow_tile')}")
        a(f"s_cmp_eq_u32 s37, 0\ns_cbranch_scc0 {L('slow_done')}")
        a("v_mov_b32 v11, v15\ns_nop 1\nv_permlane32_swap_b32 v15, v11\nv_max_f32 v15, v15, v11")
        for r in range(16):
            a(f"v_sub_f32 v{s.NEGM+r}, 0, v15\nv_mov_b32 v{O+r}, 0")
        a(f"s_mov_b32 s37, 1\ns_branch {L('slow_pass')}")
        a.label(L("slow_done"))
        a(f"s_nop 11\nv_cndmask_b32 v12, v{O+8}, v{O+12}, s[38:39]\nv_rcp_f32 v10, v12\ns_branch {L('finish')}")


def gen_attn2(a, name="attn_kernel", stamp=False, order=0, swap_at=0xf9, pf=1, st_flags="", abl=(), nld=4, bar_at=(1, 5), park=False):
    k = Attn(a, name, stamp, order, swap_at, pf, st_flags, abl, nld, bar_at, park)
    L = k.L
    a(f".p2align 8\n.type {name},@function\n{name}:")
    a(f"s_cmp_ge_u32 s2, 256\ns_cbranch_scc1 {L('exit')}")
    a(f"s_load_dwordx2 s[4:5], s[0:1], {ARG_WS}")
    if pf:
        a(f"s_load_dwordx2 s[60:61], s[0:1], {ARG_WO}\ns_load_dwordx4 s[64:67], s[0:1], {ARG_WG}\ns_load_dwordx2 s[62:63], s[0:1], {ARG_WD}")
    stamp_begin(a, stamp)
    k.prologue()
    stamp_at(a, stamp, 0)
    k.loop()
    stamp_at(a, stamp, 1)
    if park: a("s_barrier")
    k.epilogue()
    stamp_end(a, stamp, L("exit"))
    a.label(L("exit"))
    a("s_endpgm")
    k.rare()
    k.slow()
    return dict(name=name, grid=256, block=512 + 64 * nld, lds=8 * SC, nvgpr=144, nstamp=8)
```

```python
import math
import k_p1
from asmlib import *
from layout import *
from k_attn import srd
from k_attn2 import Attn, SC
from k_qkv import f2u, OOB, swap23, tr_lane_addr, lds_transpose

WS = 8
sW, sRb64, sCb8, sRb256, sCb32, sTg, sKh = 20, 72, 73, 74, 75, 76, 77
sRot4, sGrp = 7, 6
pWO, pWD, pWG, pWU, pX, pOUT = 60, 62, 64, 66, 68, 70
TBL3, X3, SCR3, W4, HC = 102400, 105472, 0, 0, 148
SPIN = 1 << 18


class Stamps:
    N = 8
    def __init__(s, a, on): s.a, s.on, s.compute = a, on, True
    def begin(s):
        if s.on:
            s.a(f"s_load_dwordx2 s[100:101], s[0:1], {ARG_WS}\ns_memtime s[78:79]\ns_memrealtime s[96:97]")
            for k in range(s.N): s.a(f"s_mov_b32 s{80+2*k}, 0")
    def at(s, k):
        if s.on and not OPT.get('l1st') and not OPT.get('rt') and not (OPT.get('ast') and s.compute and 2 <= k <= 5) and not (OPT.get('p1st') and s.compute and k >= 6): s.a(f"s_memtime s[{80+2*k}:{81+2*k}]")
    def p1(s, k):
        if s.on and OPT.get('p1st'): s.a(f"s_memtime s[{94 - 2*(1-k)}:{95 - 2*(1-k)}]")
    def l1(s, k):
        if s.on and OPT.get('l1st'): s.a(f"s_memtime s[{80+2*k}:{81+2*k}]")
    def rt(s, k):
        if s.on and OPT.get('rt'): s.a(f"s_memrealtime s[{80+2*k}:{81+2*k}]")
    def end(s, region=0):
        if not s.on: return
        a = s.a
        a("s_waitcnt vmcnt(0)\ns_memrealtime s[98:99]\ns_memtime s[6:7]\ns_waitcnt lgkmcnt(0)")
        a(f"s_lshl_b32 s3, s2, 3\ns_add_u32 s3, s3, s{sW}\ns_lshl_b32 s3, s3, 6\ns_add_u32 s3, s3, {WS_TL + s.on[1] * 65536 + region * 131072}")
        a("v_mov_b32 v4, s96\nv_mov_b32 v5, s98\nv_mov_b32 v1, s3\ns_sub_u32 s6, s6, s78\nv_mov_b32 v6, s6\nv_mov_b32 v7, 0")
        if OPT.get('rt'): a("s_mov_b32 s78, 0")
        for k in range(s.N): a(f"s_sub_u32 s{80+2*k}, s{80+2*k}, s78\nv_mov_b32 v{8+k}, s{80+2*k}")
        a("s_mov_b64 exec, 1")
        for k in range(3): a(f"global_store_dwordx4 v1, v[{4+4*k}:{7+4*k}], s[100:101] offset:{16*k}")


class Queue:
    def __init__(s, a, kind, cap): s.a, s.kind, s.cap, s.n, s.done = a, kind, cap, 0, 0
    def issue(s, text):
        s.a(text); s.n += 1
        assert s.n - s.done <= s.cap, "too many outstanding"
        return s.n
    def wait(s, tag):
        if tag > s.done:
            s.a(f"s_waitcnt {s.kind}({s.n - tag})"); s.done = tag


OPT = {}
def gen_fused(a, name="sequential_preLN__mha_block__glu_gated_geglu__prompt_kernel", stamp=False, swap_at=0xbc, bar_at=(0, 5), prio4=True, dist3=12, dist5=10, tail_at=6, mid_at=0, w5pre=22, c4=2, lprio=0, lst=False, p1st=False, l1st=False, ast=False, rt=False, pollfirst=False, sleep=4, pollmask=True, rot=False, up3=4, dbl=False, nt='', wd_at='none', abl=()):
    OPT.update(mid_at=mid_at, l1st=l1st, p1st=p1st, ast=ast, rt=rt, pollfirst=pollfirst, lprio=lprio, lst=lst, nt=nt, wd_at=wd_at, abl=abl, w5pre=w5pre)
    at = Attn(a, name, False, 0, swap_at, 0, "sc1", (), 4, bar_at, False)
    at.bar_extra = (1 << tail_at) | ((1 << mid_at) if mid_at else 0)
    at.first_bar_slack = 5 * (6 - mid_at) if mid_at else 0
    at.hold_back = 5
    at.bar_stamps = ast and bool(stamp)
    L = at.L
    st = Stamps(a, stamp)
    wsr = f"s[{WS}:{WS+3}]"

    def flag_store(phase, slot_sgpr):
        a(f"s_lshl_b32 s40, s{slot_sgpr}, 7\ns_lshl_b32 s41, s{sW}, 2\ns_add_u32 s40, s40, s41\ns_add_u32 s40, s40, {WS_FLG + phase * 32768}")
        a("v_mov_b32 v10, 1\nv_mov_b32 v11, 0\ns_waitcnt vmcnt(0)\ns_mov_b64 exec, 1")
        a(f"buffer_store_dword v10, v11, {wsr}, s40 offen sc1\ns_mov_b64 exec, -1")

    def spin(tag, load, reduce_, want):
        a(f"s_mov_b32 s41, {SPIN}")
        a.label(L(f"poll{tag}"))
        a(f"{load}\ns_sub_u32 s41, s41, 1\ns_cbranch_scc1 {L(f'polled{tag}')}")
        a(f"s_waitcnt vmcnt(0)\n{reduce_}v_cmp_ne_u32 vcc, {want}, v8\ns_nop 1")
        a(f"s_cbranch_vccz {L(f'polled{tag}')}\ns_mov_b64 exec, vcc\ns_sleep {sleep}\ns_branch {L(f'poll{tag}')}")
        a.label(L(f"polled{tag}"))
        a("s_mov_b64 exec, -1")

    def poll(phase, group, voff, tag=None):
        if isinstance(group, str): a(f"s_mov_b32 s40, {WS_FLG + phase * 32768 + int(group) * 4096}")
        else: a(f"s_lshl_b32 s40, s{group}, 12\ns_add_u32 s40, s40, {WS_FLG + phase * 32768}")
        spin(tag or str(phase), f"buffer_load_dwordx4 v[8:11], v{voff}, {wsr}, s40 offen sc1",
             "v_and_b32 v8, v8, v9\nv_and_b32 v10, v10, v11\nv_and_b32 v8, v8, v10\n", 1)

    def later_ids():
        a(f"s_and_b32 s{sGrp}, s2, 7\ns_lshr_b32 s{sCb8}, s2, 5")
        a(f"s_lshl_b32 s{sRb64}, s{sGrp}, 2\ns_bfe_u32 s3, s2, 0x20003\ns_add_u32 s{sRb64}, s{sRb64}, s3")
        a(f"s_and_b32 s{sRb256}, s2, 6\ns_bfe_u32 s3, s2, 0x10003\ns_add_u32 s{sRb256}, s{sRb256}, s3")
        a(f"s_and_b32 s{sCb32}, s2, 1\ns_lshl_b32 s{sCb32}, s{sCb32}, 4\ns_lshr_b32 s3, s2, 4\ns_add_u32 s{sCb32}, s{sCb32}, s3")
        if rot: a(f"s_mul_i32 s3, s{sCb32}, 13\ns_lshr_b32 s3, s3, 6\ns_mul_i32 s3, s3, 5\ns_sub_u32 s{sRot4}, s{sCb32}, s3")
        else: a(f"s_mov_b32 s{sRot4}, 0")

    a(f".p2align 8\n.type {name},@function\n{name}:")
    a(f"s_cmp_ge_u32 s2, 256\ns_cbranch_scc1 {L('exit')}")
    a(f"s_load_dwordx4 s[40:43], s[0:1], {ARG_X}\ns_load_dwordx2 s[4:5], s[0:1], {ARG_WS}")
    st.begin()
    a(f"v_lshrrev_b32 v1, 6, v0\nv_and_b32 v0, 63, v0\nv_readfirstlane_b32 s{sW}, v1")
    k_p1.ids(a)
    a(f"s_cmp_ge_u32 s{sW}, 8\ns_cbranch_scc1 {L('loader')}\ns_waitcnt lgkmcnt(0)")
    srd(a, WS, 4, WS_END)
    a(f"s_cmp_ge_u32 s{sW}, 4\ns_cbranch_scc1 {L('stats')}")
    k_p1.compute(a, L, st, abl=abl)
    a(f"s_lshl_b32 s42, s{k_p1.sRb}, 4\ns_add_u32 s42, s42, s{k_p1.sCb}")
    st.l1(3)
    flag_store(0, 42)
    st.l1(4)
    a.label(L("p2_entry"))
    a(f"s_load_dwordx2 s[{pOUT}:{pOUT+1}], s[0:1], {ARG_OUT}")
    later_ids()
    at.ids(); at.setup(); at.setup2()
    st.rt(7) if OPT['p1st'] else None
    a("s_waitcnt lgkmcnt(0)\ns_barrier\ns_barrier")
    st.l1(5)
    at.ld_flags = "sc1"
    at.first_loads("sc1")
    at.prologue2()
    st.at(0); st.l1(6)
    at.loop()
    a("s_waitcnt lgkmcnt(0)")
    st.at(1); st.rt(0)
    at.epilogue()
    vT16, vQ, vWA, vTB, vO, vO2, vRA, vS1, vS2, vL16 = 2, 3, 4, 5, 6, 7, 8, 9, 12, 1
    MUX, ACC, WB, OF, XR = 13, 16, 40, 96, 136
    a(f"s_and_b32 s{sTg}, s{sW}, 3\ns_lshr_b32 s{sKh}, s{sW}, 2")
    a(f"v_and_b32 v{vT16}, 15, v0\nv_lshrrev_b32 v{vQ}, 4, v0")
    a(f"s_lshl_b32 s42, s{sRb64}, 8\ns_lshl_b32 s43, s{sTg}, 6\ns_add_u32 s42, s42, s43\ns_add_u32 s49, s42, {WS_MUX}\nv_lshlrev_b32 v14, 2, v{vT16}")
    a(f"s_mul_i32 s43, s{sCb8}, 8192\ns_add_u32 s46, s42, s43\ns_add_u32 s46, s46, {WS_ST}")
    a(f"s_mul_i32 s42, s{sKh}, 51200\nv_add_u32 v{vWA}, s42, v{vL16}")
    a(f"s_mul_i32 s42, s{sKh}, 1280\ns_add_u32 s42, s42, {TBL3}\nv_and_b32 v10, 1, v0\nv_lshlrev_b32 v10, 4, v10\nv_lshl_add_u32 v10, v{vQ}, 5, v10\nv_add_u32 v{vTB}, s42, v10")
    a(f"v_lshrrev_b32 v10, 5, v0\nv_mul_u32_u24 v10, 1280, v10\nv_bfe_u32 v11, v0, 4, 1\nv_lshl_add_u32 v10, v11, 9, v10\nv_lshl_add_u32 v{vO}, v{vT16}, 4, v10")
    a(f"v_mul_u32_u24 v10, 2560, v{vQ}\nv_lshl_add_u32 v10, v{vT16}, 3, v10\nv_add_u32 v{vO2}, 1024, v10")
    a(f"s_lshl_b32 s42, s{sTg}, 4\nv_add_u32 v10, s42, v{vT16}\nv_mul_u32_u24 v10, 160, v10\nv_lshl_add_u32 v10, v{vQ}, 3, v10\nv_add_u32 v{vRA}, {X3}, v10")
    a(f"s_lshl_b32 s42, s{sRb64}, 1\ns_lshr_b32 s43, s{sTg}, 1\ns_add_u32 s47, s42, s43\ns_and_b32 s48, s{sTg}, 1")
    a(f"s_mul_i32 s44, s47, {O_TILE}\ns_mul_i32 s43, s{sKh}, 20480\ns_add_u32 s44, s44, s43\ns_add_u32 s44, s44, {WS_O}")
    a(f"s_lshl_b32 s43, s48, 7\ns_add_u32 s45, s44, s43\ns_add_u32 s44, s45, s43")
    for r in range(24): a(f"v_mov_b32 v{ACC+r}, 0")
    flag_store(1, 2)
    st.rt(1)
    a("s_barrier\ns_barrier")
    st.at(2); st.rt(2)
    vm, lg = Queue(a, "vmcnt", 63), Queue(a, "lgkmcnt", 15)
    otag = {}
    def oload(s_):
        if s_ < 2:
            vm.issue(f"buffer_load_dwordx2 {vr(OF+4*s_,2)}, v{vO2}, {wsr}, s45 offen sc1")
            otag[s_] = vm.issue(f"buffer_load_dwordx2 {vr(OF+4*s_+2,2)}, v{vO2}, {wsr}, s45 offen offset:1280 sc1")
            if s_ == 0: a("s_add_u32 s45, s45, 10240")
        else:
            otag[s_] = vm.issue(f"buffer_load_dwordx4 {vr(OF+4*s_,4)}, v{vO}, {wsr}, s44 offen sc1")
            a("s_add_u32 s44, s44, 2560")
    UP3 = up3
    for s_ in range(UP3): oload(s_)
    vm.issue(f"buffer_load_dword v{MUX}, v14, {wsr}, s49 offen sc1")
    for j in range(5): lg.issue(f"ds_read_b64 {vr(XR+2*j,2)}, v{vRA} offset:{j*32}")
    items = [(s_, j) for s_ in range(10) for j in range(6)]
    NB3, wtag = dist3 + 1, {}
    def wread3(n):
        if n >= len(items): return
        s_, j = items[n]; b = WB + 4 * (n % NB3)
        if j == 5:
            wtag[n] = lg.issue(f"ds_read_b128 {vr(b,4)}, v{vTB} offset:{s_*128}")
        else:
            wtag[n] = lg.issue(f"ds_read_b128 {vr(b,4)}, v{vWA} offset:{s_*5120 + j*1024}")
    lg.wait(1)
    for n in range(dist3):
        if lg.n - lg.done > 13: lg.wait(lg.done + 2)
        wread3(n)
    for n, (s_, j) in enumerate(items):
        if j == 0 and 'p3nowait' not in abl: vm.wait(otag[s_])
        if n % 3 == 0: lg.wait(wtag[min(n + 2, len(items) - 1)])
        a(f"v_mfma_f32_16x16x32_bf16 {vr(ACC+4*j,4)}, {vr(WB+4*(n % NB3),4)}, {vr(OF+4*s_,4)}, {vr(ACC+4*j,4)}")
        wread3(n + dist3)
        if j == 1 and s_ + UP3 < 10: oload(s_ + UP3)
    a("s_barrier")
    st.at(3)
    a(f"s_mul_i32 s42, s{sTg}, 6144\nv_lshl_add_u32 v10, v0, 4, s42\ns_cmp_eq_u32 s{sKh}, 0\ns_cbranch_scc1 {L('p3_fin')}\ns_nop 2")
    for j in range(6): a(f"ds_write_b128 v10, {vr(ACC+4*j,4)} offset:{SCR3 + j*1024}")
    a(f"s_waitcnt lgkmcnt(0)\ns_barrier\ns_branch {L('p3_done')}")
    a.label(L("p3_fin"))
    U = 64
    for j in range(5):
        for e in range(2):
            a(f"v_lshlrev_b32 v{HC+4*j+2*e}, 16, v{XR+2*j+e}\nv_and_b32 v{HC+4*j+2*e+1}, 0xffff0000, v{XR+2*j+e}")
    for r in range(0, 20, 2):
        a(f"v_pk_add_f32 {vr(HC+r,2)}, {vr(HC+r,2)}, {vr(ACC+r,2)}")
    a(f"v_add_f32 v{MUX}, v{MUX}, v{ACC+20}\nv_add_f32 v{MUX}, v{MUX}, v{ACC+21}")
    a(f"v_lshrrev_b32 v11, 1, v{vQ}\nv_lshlrev_b32 v11, 9, v11\nv_lshl_add_u32 v15, v{vT16}, 4, v11\nv_and_b32 v11, 1, v{vQ}\nv_lshl_add_u32 v{vS2}, v11, 10, v15")
    a(f"s_mul_i32 s44, s47, {H_TILE}\ns_mul_i32 s43, s{sCb8}, 5120\ns_add_u32 s44, s44, s43\ns_lshl_b32 s43, s48, 8\ns_add_u32 s44, s44, s43\ns_add_u32 s44, s44, {WS_H}\ns_add_u32 s45, s44, 4096")
    a("s_barrier")
    for j in range(6): a(f"ds_read_b128 {vr(WB+4*j,4)}, v10 offset:{SCR3 + j*1024}")
    a("s_waitcnt lgkmcnt(1)")
    for r in range(0, 20, 2):
        a(f"v_pk_add_f32 {vr(HC+r,2)}, {vr(HC+r,2)}, {vr(WB+r,2)}")
    a(f"s_waitcnt lgkmcnt(0)\nv_add_f32 v{MUX}, v{MUX}, v{WB+20}\nv_add_f32 v{MUX-1+2}, v{MUX}, v{WB+21}")
    for r in range(0, 20, 2):
        a(f"v_pk_add_f32 {vr(ACC+r,2)}, {vr(HC+r,2)}, v[14:15] op_sel_hi:[1,0] neg_lo:[0,1] neg_hi:[0,1]")
    for r in range(10):
        a(f"v_cvt_pk_bf16_f32 v{U+r}, v{ACC+2*r}, v{ACC+2*r+1}")
    a(f"v_mov_b32 v{U+10}, v{U+8}\nv_mov_b32 v{U+11}, v{U+9}\nv_pk_mul_f32 v[10:11], {vr(ACC,2)}, {vr(ACC,2)}")
    for k in range(3):
        a(f"v_permlane16_swap_b32 v{U+4*k}, v{U+4*k+2}\nv_permlane16_swap_b32 v{U+4*k+1}, v{U+4*k+3}")
    for k in range(2):
        a(f"buffer_store_dwordx4 {vr(U+4*k,4)}, v{vS2}, {wsr}, s44 offen offset:{k*2048} sc1")
    a("s_mov_b32 exec_lo, 0xffff\ns_mov_b32 exec_hi, 0xffff")
    a(f"buffer_store_dwordx4 {vr(U+8,4)}, v15, {wsr}, s45 offen sc1\ns_mov_b64 exec, -1")
    for r in range(2, 20, 2):
        a(f"v_pk_fma_f32 v[10:11], {vr(ACC+r,2)}, {vr(ACC+r,2)}, v[10:11]")
    a("v_add_f32 v10, v10, v11\nv_mov_b32 v11, v10\ns_nop 1\nv_permlane32_swap_b32 v10, v11\nv_add_f32 v10, v10, v11\nv_mov_b32 v11, v10")
    a(f"v_lshlrev_b32 v14, 2, v{vT16}\ns_nop 0\nv_permlane16_swap_b32 v10, v11\nv_add_f32 v10, v10, v11\ns_mov_b64 exec, 0xffff")
    a(f"buffer_store_dword v10, v14, {wsr}, s46 offen sc1\ns_mov_b64 exec, -1")
    a(f"s_lshl_b32 s42, s{sRb64}, 3\ns_add_u32 s42, s42, s{sCb8}")
    flag_store(2, 42)
    st.rt(3)
    a.label(L("p3_done"))
    a("s_barrier")
    A4, W4B, T4, PT = 16, 64, 88, 120
    acc4 = lambda m, j, i: A4 + ((m * 3 + j) * 2 + i) * 4
    a(f"v_add_u32 v{vWA}, {W4}, v{vL16}")
    a(f"v_lshlrev_b32 v10, 9, v{vQ}\nv_lshl_add_u32 v{vO}, v{vT16}, 4, v10")
    a(f"s_lshl_b32 s49, s{sRb256}, 3\ns_add_u32 s49, s49, s{sW}\ns_mul_i32 s52, s49, {H_TILE}\ns_add_u32 s52, s52, {WS_H}\ns_mov_b32 s53, s{sRot4}\ns_lshl_b32 s44, s53, 13\ns_add_u32 s44, s44, s52")
    a(f"s_lshl_b32 s45, s49, 7\ns_add_u32 s45, s45, {WS_ST}\nv_lshlrev_b32 v10, 14, v{vQ}\nv_lshl_add_u32 v{vO2}, v{vT16}, 2, v10\ns_add_u32 s46, s45, 8192")
    a(f"s_mul_i32 s50, s49, {FF_TILE}\ns_mul_i32 s43, s{sCb32}, 3072\ns_add_u32 s50, s50, s43\ns_add_u32 s50, s50, {WS_FF}")
    for r in range(48): a(f"v_mov_b32 v{A4+r}, 0")
    a("s_mov_b32 s51, 0")
    if prio4:
        a(f"s_setprio 1\ns_cmp_eq_u32 s{sKh}, 0\ns_cbranch_scc0 {L('p4_prio')}\ns_setprio 2")
        a.label(L("p4_prio"))
    a("s_barrier")
    st.at(4); st.rt(4)
    RR, C0, C1 = 124, 126, 128
    k0 = -2 * 1.4426950408889634 * math.sqrt(2 / math.pi)
    def p4_stats():
        for i in range(2):
            q = PT + 2 * i
            a(f"v_add_f32 v{q}, v{q}, v{q+1}\nv_mov_b32 v{q+1}, v{q}")
        a("s_nop 0")
        for i in range(2):
            q = PT + 2 * i
            a(f"v_permlane32_swap_b32 v{q}, v{q+1}\nv_add_f32 v{q}, v{q}, v{q+1}\nv_mov_b32 v{q+1}, v{q}")
        a("s_nop 0")
        for i in range(2):
            q = PT + 2 * i
            a(f"v_permlane16_swap_b32 v{q}, v{q+1}\nv_add_f32 v{q}, v{q}, v{q+1}")
            a(f"v_mov_b32 v{RR+i}, {f2u(1e-5):#x}\nv_fmac_f32 v{RR+i}, {f2u(1/640):#x}, v{q}\nv_rsq_f32 v{q}, v{RR+i}\ns_nop 0")
            a(f"v_mul_f32 v{C0+i}, {f2u(k0):#x}, v{q}\nv_mul_f32 v{q}, v{q}, v{q}\nv_mul_f32 v{q}, {f2u(0.044715):#x}, v{q}\nv_mul_f32 v{C1+i}, v{C0+i}, v{q}")
    def hload(s_):
        for i in range(0 if 'p4noload' in abl else 2):
            a(f"buffer_load_dwordx4 {vr(T4+8*(s_ % 4)+4*i,4)}, v{vO}, {wsr}, s44 offen offset:{i*256} sc1")
        a("s_add_u32 s44, s44, 2048")
    def wread4(s_, t):
        m, j = t % 2, t // 2
        a(f"ds_read_b128 {vr(W4B+4*t,4)}, v{vWA} offset:{s_*6144 + m*3072 + j*1024}")
    hload(0)
    for i in range(2):
        for e in range(2):
            a(f"buffer_load_dword v{PT+2*i+e}, v{vO2}, {wsr}, s{45+e} offen offset:{i*64} sc1")
    for s_ in range(1, 4): hload(s_)
    for t in range(6): wread4(0, t)
    a("s_waitcnt vmcnt(10)")
    a(".p2align 3")
    a.label(L("p4_loop"))
    for s_ in range(4):
        if s_ == 0:
            a("s_add_u32 s53, s53, 1\ns_cmp_eq_u32 s53, 5\ns_cselect_b32 s53, 0, s53\ns_lshl_b32 s44, s53, 13\ns_add_u32 s44, s44, s52")
            a(f"s_cmp_eq_u32 s51, 4\ns_cselect_b32 s44, {OOB}, s44")
        if 'p4nowait' not in abl: a("s_waitcnt vmcnt(6)")
        for t in range(6):
            m, j = t % 2, t // 2
            if t % 2 == 0: a("s_waitcnt lgkmcnt(4)")
            for i in range(2):
                a(f"v_mfma_f32_16x16x32_bf16 {vr(acc4(m,j,i),4)}, {vr(W4B+4*t,4)}, {vr(T4+8*s_+4*i,4)}, {vr(acc4(m,j,i),4)}")
            wread4(s_ + 1, t)
        hload(s_)
        if s_ == 1:
            a(f"s_cmp_eq_u32 s51, 0\ns_cbranch_scc1 {L('p4_stats')}")
            a.label(L("p4_statsback"))
    a(f"v_add_u32 v{vWA}, {4*6144}, v{vWA}\ns_add_u32 s51, s51, 1\ns_cmp_lt_u32 s51, 5\ns_cbranch_scc1 {L('p4_loop')}")
    a(f"s_waitcnt lgkmcnt(0)\ns_cmp_eq_u32 s{sKh}, 0\ns_cbranch_scc1 {L('p4_lead')}\ns_barrier")
    a.label(L("p4_lead"))
    a("s_setprio 0")
    st.at(5)
    T_ = W4B
    for j in range(3):
        G = lambda i, r: acc4(0, j, i) + r
        Uu = lambda i, r: acc4(1, j, i) + r
        pr = [(i, r) for i in range(2) for r in (0, 2)]
        sel2 = lambda i: f"op_sel:[0,{i},{i}] op_sel_hi:[1,{i},{i}]"
        for i, r in pr: a(f"v_pk_mul_f32 {vr(T_+4*i+r,2)}, {vr(G(i,r),2)}, {vr(G(i,r),2)}")
        for i, r in pr: a(f"v_pk_fma_f32 {vr(T_+4*i+r,2)}, {vr(T_+4*i+r,2)}, {vr(C1,2)}, {vr(C0,2)} {sel2(i)}")
        for i, r in pr: a(f"v_pk_mul_f32 {vr(T_+4*i+r,2)}, {vr(T_+4*i+r,2)}, {vr(G(i,r),2)}")
        for r in range(8): a(f"v_exp_f32 v{T_+r}, v{T_+r}")
        for i, r in pr: a(f"v_pk_mul_f32 {vr(G(i,r),2)}, {vr(G(i,r),2)}, {vr(Uu(i,r),2)}")
        for i, r in pr: a(f"v_pk_fma_f32 {vr(T_+4*i+r,2)}, {vr(T_+4*i+r,2)}, {vr(RR,2)}, {vr(RR,2)} {sel2(i)}")
        for r in range(8): a(f"v_rcp_f32 v{T_+r}, v{T_+r}")
        a("s_nop 0")
        for i, r in pr: a(f"v_pk_mul_f32 {vr(G(i,r),2)}, {vr(G(i,r),2)}, {vr(T_+4*i+r,2)}")
        P_ = W4B + 8 + 4 * j
        for i in range(2):
            for e in range(2): a(f"v_cvt_pk_bf16_f32 v{P_+2*i+e}, v{G(i,2*e)}, v{G(i,2*e+1)}")
        a(f"s_nop 1\nv_permlane16_swap_b32 v{P_}, v{P_+2}\nv_permlane16_swap_b32 v{P_+1}, v{P_+3}")
        a(f"buffer_store_dwordx4 {vr(P_,4)}, v{vL16}, {wsr}, s50 offen offset:{j*1024} sc1")
    a(f"s_cmp_eq_u32 s{sKh}, 0\ns_cbranch_scc0 {L('p4_lag')}\ns_barrier")
    a.label(L("p4_lag"))
    A5, W5B, F5, NB5, D5 = 16, 56, 96, 10, 6
    vCur, vNxt = vWA, vTB
    a(f"s_and_b32 s49, s{sW}, 1\ns_mul_i32 s42, s49, 5120\nv_add_u32 v{vCur}, s42, v{vL16}\nv_add_u32 v{vNxt}, 40960, v{vCur}")
    a(f"s_mul_i32 s44, s47, {FF_TILE}\ns_mul_i32 s43, s49, 49152\ns_add_u32 s44, s44, s43\ns_add_u32 s44, s44, {WS_FF}")
    a(f"s_lshl_b32 s43, s49, 8\nv_add_u32 v{vO2}, s43, v{vO}\nv_xor_b32 v{vRA}, 256, v{vO2}")
    for r in range(40): a(f"v_mov_b32 v{A5+r}, 0")
    a(f"s_mov_b32 s51, 0\ns_setprio 0\ns_mov_b32 s53, 40960\ns_mov_b32 s52, {-3*40960 & 0xffffffff}")
    a(f"s_lshl_b32 s42, s{sRb256}, 5\ns_add_u32 s42, s42, s{sCb32}")
    flag_store(3, 42)
    st.rt(5)
    a(f"s_barrier\ns_cmp_eq_u32 s{sKh}, 0\ns_cbranch_scc0 {L('done')}\ns_barrier")
    st.at(6); st.rt(6)
    def fload(s_):
        for i in range(2):
            a(f"buffer_load_dwordx4 {vr(F5+8*(s_ % D5)+4*i,4)}, v{(vO2, vRA)[i]}, {wsr}, s44 offen offset:{(s_ % 2) * 2048} sc1")
        if s_ % 2: a("s_add_u32 s44, s44, 4096")
    def wread5(n):
        s_, j = divmod(n, 5)
        b, so = divmod(s_, 4)
        a(f"ds_read_b128 {vr(W5B+4*(n % NB5),4)}, v{(vCur, vNxt)[b % 2]} offset:{so*10240 + j*1024}")
    for s_ in range(D5): fload(s_)
    for n in range(10): wread5(n)
    a(".p2align 3")
    a.label(L("p5_loop"))
    for n in range(60):
        s_, j = divmod(n, 5)
        if j == 0: a(f"s_waitcnt vmcnt({2*(D5-1)}) lgkmcnt(5)")
        if n in (10, 30) and 'p5nobar' not in abl:
            a(f"s_cbranch_scc{1 if n == 10 else 0} {L(f'p5_bar{n}')}") if n == 10 else a("s_barrier")
            if n == 10: a.label(L(f"p5_back{n}"))
        for i in range(2):
            a(f"v_mfma_f32_16x16x32_bf16 {vr(A5+20*i+4*j,4)}, {vr(W5B+4*(n % NB5),4)}, {vr(F5+8*(s_ % D5)+4*i,4)}, {vr(A5+20*i+4*j,4)}")
        wread5(n + 10)
        if n in (9, 29, 49):
            r = (vCur, vNxt)[(n // 20) % 2]
            a(f"v_add_u32 v{r}, 81920, v{r}\nv_subrev_u32 v14, 163840, v{r}\nv_min_u32 v{r}, v{r}, v14")
        if j == 4:
            if s_ == 6: a(f"s_cselect_b32 s44, {OOB}, s44")
            if 'p5noload' not in abl:
                fload(s_ + D5)
                if s_ % 2: a("s_cmp_eq_u32 s51, 1")
    a(f"v_swap_b32 v{vCur}, v{vNxt}\ns_add_u32 s51, s51, 1\ns_cmp_eq_u32 s51, 1\ns_cbranch_scc1 {L('p5_loop')}")
    a("s_waitcnt lgkmcnt(0)\ns_barrier")
    st.at(7); st.rt(7)
    a(f"s_mul_i32 s42, s{sW}, 5120\nv_lshl_add_u32 v10, v0, 4, s42\ns_xor_b32 s43, s{sW}, 1\ns_mul_i32 s43, s43, 5120\nv_lshl_add_u32 v9, v0, 4, s43\ns_nop 1")
    for j in range(5): a(f"ds_write_b128 v9, {vr(A5+20+4*j,4)} offset:{j*1024}")
    srd(a, 12, pOUT, S * D * 2)
    a(f"v_mul_u32_u24 v11, 1280, v{vT16}\nv_lshrrev_b32 v14, 1, v{vQ}\nv_lshl_add_u32 v15, v14, 4, v11\nv_and_b32 v14, 1, v{vQ}\nv_lshl_add_u32 v{vS2}, v14, 5, v15")
    a(f"s_lshl_b32 s44, s{sRb64}, 2\ns_add_u32 s44, s44, s{sTg}\ns_mul_i32 s44, s44, {16*1280}\ns_mul_i32 s43, s{sCb8}, 160\ns_add_u32 s44, s44, s43")
    for r in range(0, 20, 2):
        a(f"v_pk_add_f32 {vr(HC+r,2)}, {vr(HC+r,2)}, {vr(A5+r,2)}")
    a("s_waitcnt lgkmcnt(0)\ns_barrier")
    U = 76
    for j in range(5): a(f"ds_read_b128 {vr(W5B+4*j,4)}, v10 offset:{j*1024}")
    for j in range(5):
        a(f"s_waitcnt lgkmcnt({4-j})")
        for r in (0, 2): a(f"v_pk_add_f32 {vr(HC+4*j+r,2)}, {vr(HC+4*j+r,2)}, {vr(W5B+4*j+r,2)}")
        for e in range(2): a(f"v_cvt_pk_bf16_f32 v{U+2*j+e}, v{HC+4*j+2*e}, v{HC+4*j+2*e+1}")
    a(f"v_mov_b32 v{U+10}, v{U+8}\nv_mov_b32 v{U+11}, v{U+9}")
    for k in range(3):
        a(f"v_permlane16_swap_b32 v{U+4*k}, v{U+4*k+2}\nv_permlane16_swap_b32 v{U+4*k+1}, v{U+4*k+3}")
    for k in range(2):
        a(f"buffer_store_dwordx4 {vr(U+4*k,4)}, v{vS2}, s[12:15], s44 offen offset:{k*64}")
    a("s_mov_b32 exec_lo, 0xffff\ns_mov_b32 exec_hi, 0xffff")
    a(f"buffer_store_dwordx4 {vr(U+8,4)}, v15, s[12:15], s44 offen offset:128\ns_mov_b64 exec, -1")
    a.label(L("done"))
    st.end()
    a.label(L("exit"))
    a("s_endpgm")
    if 'p5nobar' not in abl:
        a.label(L("p5_bar10"))
        a(f"s_barrier\ns_branch {L('p5_back10')}")
    a.label(L("p4_stats"))
    p4_stats()
    a(f"s_branch {L('p4_statsback')}")

    a.label(L("stats"))
    def own_slots():
        later_ids()
        a(f"s_lshl_b32 s44, s{k_p1.sRb}, 4\ns_add_u32 s44, s44, s{k_p1.sCb}\ns_lshl_b32 s45, s{sRb64}, 3\ns_add_u32 s45, s45, s{sCb8}")
        a(f"s_lshl_b32 s46, s{sRb256}, 5\ns_add_u32 s46, s46, s{sCb32}")
        return (44, 2, 45, 46, 2)
    k_p1.stats(a, L, name, own_slots, abl)
    a(f"s_branch {L('p2_entry')}")

    def loader_entry():
        a.label(L("loader"))
        a(f"s_sub_u32 s{sW}, s{sW}, 8")
        k_p1.loader(a, L, st, spin)
        a(f"s_load_dwordx4 s[{pWG}:{pWG+3}], s[0:1], {ARG_WG}\ns_load_dwordx2 s[{pX}:{pX+1}], s[0:1], {ARG_X}")
        later_ids()
        at.ids()
        a(f"s_mov_b32 s63, s{at.sKV}")
        loader_setup(a, L)
        h = at.sHead
        a(f"s_add_u32 s46, s{h}, 32\ns_mul_i32 s46, s46, 43\ns_lshr_b32 s46, s46, 8\ns_mul_i32 s47, s{h}, 20\ns_add_u32 s48, s47, 19")
        a(f"s_lshr_b32 s47, s47, 7\ns_add_u32 s47, s47, 11\ns_lshr_b32 s48, s48, 7\ns_add_u32 s48, s48, 11\ns_mul_i32 s49, s{h}, 43\ns_lshr_b32 s49, s49, 8\ns_lshr_b32 s50, s2, 5\ns_lshl_b32 s50, s50, 1")
        a("v_and_b32 v6, 15, v0\nv_and_b32 v7, 1, v0\nv_add_u32 v7, s50, v7\nv_cmp_le_u32 vcc, 48, v0\nv_mov_b32 v8, s46\nv_mov_b32 v9, s47")
        a("v_cndmask_b32 v6, v6, v7, vcc\nv_mov_b32 v7, s49\nv_cndmask_b32 v7, v9, v7, vcc\nv_cmp_gt_u32 vcc, 16, v0\nv_mov_b32 v9, s48\nv_bfe_u32 v10, v0, 4, 2")
        a("v_cndmask_b32 v7, v7, v8, vcc\nv_cmp_eq_u32 vcc, 2, v10\nv_lshlrev_b32 v22, 7, v0\nv_lshlrev_b32 v6, 4, v6")
        a("v_cndmask_b32 v7, v7, v9, vcc\nv_add_lshl_u32 v6, v6, v7, 7\ns_waitcnt lgkmcnt(0)")
        st.l1(5)
        a(f"s_barrier\ns_cmp_eq_u32 s{sW}, 0\ns_cbranch_scc0 {L('l_b1')}")
        poll(0, "0", 6)
        a.label(L("l_b1"))
        st.l1(6)
        a("s_barrier")
    at.loader_entry = loader_entry
    at.loader_early = lambda: loader_early(a)
    at.loader_tail = lambda: loader_tail(a, L, poll, flag_store, st)
    at.rare()
    at.slow()
    a.label(f"{name}_codeend")
    return dict(name=name, grid=256, block=768, lds=163840, nvgpr=168, nstamp=8, fused=True)


vX, vG, vT96, vSc, ST, DUMMY = 12, 17, 20, 21, 32, 24
EXTRA = (28, 152, 156, 160, 164)

def loader_setup(a, L):
    a("s_mov_b32 s54, 6554\ns_mov_b32 s55, 10923")
    for i in range(3):
        a(f"v_add_u32 v2, {64*i}, v0\nv_mul_u32_u24 v3, s55, v2\nv_lshrrev_b32 v3, 16, v3\nv_mul_u32_u24 v6, 6, v3\nv_sub_u32 v6, v2, v6")
        swap23(a, 3, 7)
        a(f"v_mul_u32_u24 v10, 3072, v7\nv_lshl_add_u32 v{vG+i}, v6, 4, v10")
    a(f"s_mul_i32 s47, s{sW}, 5120\ns_add_u32 s47, s47, {7 * SC}\nv_add_u32 v{vSc}, s47, v1")
    tr_lane_addr(a, 96, vT96, 47)
    for i in range(5):
        a(f"v_add_u32 v2, {64*i}, v0\nv_mul_u32_u24 v3, s54, v2\nv_lshrrev_b32 v3, 16, v3\nv_mul_u32_u24 v3, 1120, v3\nv_lshl_add_u32 v{vX+i}, v2, 4, v3")
    a("v_lshrrev_b32 v4, 1, v0\nv_lshlrev_b32 v4, 7, v4\nv_and_b32 v5, 1, v0\nv_lshl_add_u32 v4, v5, 4, v4\nv_and_b32 v5, 31, v0\nv_lshlrev_b32 v5, 7, v5")


def sweep(a, srd_, sreg, cnt, fl=''):
    for k in range(cnt):
        a(f"buffer_load_dwordx4 {vr(DUMMY, 4)}, v1, s[{srd_}:{srd_+3}], s{sreg} offen offset:{(k % 4) * 1024} {fl}")
        if k % 4 == 3: a(f"s_add_u32 s{sreg}, s{sreg}, 4096")


def loader_early(a):
    n = k_p1.job_stores(a)
    a(f"s_mul_i32 s34, s{sCb8}, {IMG_CB}\ns_add_u32 s34, s34, {WS_IMG}\ns_mul_i32 s31, s{sCb8}, 160")
    a(f"s_and_b32 s48, s{sRb64}, 3\ns_lshl_b32 s48, s48, 2\ns_add_u32 s48, s48, s{sW}")
    srd(a, 24, pX, S * D * 2)
    a(f"s_lshr_b32 s32, s2, 3\ns_lshl_b32 s32, s32, 2\ns_add_u32 s32, s32, s{sW}\ns_mul_i32 s33, s32, 2560\ns_mul_i32 s35, s{sGrp}, {256*1280}\ns_add_u32 s33, s33, s35")
    sweep(a, 24, 33, 3)
    return n + 3


def loader_tail(a, L, poll, flag_store, st):
    wsr = f"s[{WS}:{WS+3}]"
    st.compute = False
    st2 = st
    if OPT['lst']: st = Stamps(a, False)
    else: st2 = Stamps(a, False)
    st2.at(0)
    def dma_run(label, count):
        a(f"s_mov_b32 s35, {count}")
        a.label(L(label))
        a(f"s_mov_b32 m0, s33\ns_add_u32 s33, s33, 1024\nbuffer_load_dwordx4 v1, {wsr}, s32 offen sc1 lds\ns_add_u32 s32, s32, 1024")
        a(f"s_sub_u32 s35, s35, 1\ns_cmp_lg_u32 s35, 0\ns_cbranch_scc1 {L(label)}")
    flag_store(4, 2)
    st2.at(1)
    srd(a, 12, pWG, D * DF * 2)
    srd(a, 16, pWU, D * DF * 2)
    a(f"s_mul_i32 s47, s{sCb32}, 96\ns_mul_i32 s32, s{sW}, 5\ns_lshl_b32 s33, s{sRot4}, 2\ns_add_u32 s32, s32, s33")
    for k in range(5):
        a(f"s_cmp_ge_u32 s32, 20\ns_cselect_b32 s33, 20, 0\ns_sub_u32 s32, s32, s33\ns_mul_i32 s33, s32, {32*3072}\ns_add_u32 s33, s33, s47\ns_add_u32 s32, s32, 1")
        for m in range(2):
            for i in range(3):
                a(f"buffer_load_dwordx4 {vr(ST + ((k*2+m)*3+i)*4, 4)}, v{vG+i}, s[{12+4*m}:{15+4*m}], s33 offen")
    st2.at(2)
    if OPT['mid_at']: a("s_barrier")
    poll(4, sCb8, 5, "j")
    st2.at(3)
    a(f"s_cmp_eq_u32 s{sW}, 0\ns_cbranch_scc1 {L('l_notbl')}\ns_sub_u32 s33, s{sW}, 1\ns_lshl_b32 s33, s33, 1")
    poll(4, 33, 22, "t")
    a.label(L("l_notbl"))
    a(f"s_mul_i32 s33, s48, {IMG_CB // 16}\ns_add_u32 s33, s33, s34")
    sweep(a, WS, 33, 22, "sc1")
    st2.at(4)
    for b in range(10):
        lds_transpose(a, [ST + (b*3+i)*4 for i in range(3)], vSc, vT96, 768)
    a(f"s_mul_i32 s33, s{sW}, 5120\ns_add_u32 s33, s33, {7 * SC}\ns_add_u32 s32, s33, s63")
    dma_run("l_kv7", 5)
    a(f"s_mul_i32 s33, s{sW}, 25600\ns_add_u32 s32, s33, s34")
    a("s_waitcnt vmcnt(0)")
    st.at(0); st2.at(5)
    a("s_barrier")
    st2.at(6)
    dma_run("l_w3", 25)
    a(f"s_cmp_ge_u32 s{sW}, 2\ns_cbranch_scc1 {L('l_x')}\ns_cmp_eq_u32 s{sW}, 0\ns_cbranch_scc1 {L('l_a2')}")
    a(f"s_mov_b32 s32, {WS_TBL}\ns_mov_b32 s33, {TBL3}")
    dma_run("l_tbl", 3)
    a(f"s_branch {L('l_a2')}")
    a.label(L("l_x"))
    a(f"s_lshl_b32 s32, s{sRb64}, 1\ns_add_u32 s32, s32, s{sW}\ns_sub_u32 s32, s32, 2\ns_mul_i32 s32, s32, {32*1280}\ns_add_u32 s32, s32, s31")
    a(f"s_mul_i32 s33, s{sW}, 5120\ns_add_u32 s33, s33, {X3 - 10240}")
    for i in range(5):
        a(f"s_mov_b32 m0, s33\ns_add_u32 s33, s33, 1024\nbuffer_load_dwordx4 v{vX+i}, s[24:27], s32 offen lds")
    a.label(L("l_a2"))
    a("s_add_u32 s34, s34, 102400")
    def wd_src(dst, slot):
        a(f"s_lshr_b32 s37, {slot}, 1")
        a(f"s_and_b32 s38, {slot}, 1\ns_mul_i32 s38, s38, 24\ns_add_u32 s37, s37, s38\ns_mul_i32 s{dst}, s37, 5120\ns_add_u32 s{dst}, s{dst}, s34")
    for u in range(6):
        a(f"s_mul_i32 s39, s{sW}, 6\ns_add_u32 s39, s39, {u}"); wd_src(46 + u, "s39")
    regs5 = [ST + 4 * p for p in range(25)] + list(EXTRA)
    def stage(p, sreg, regs):
        if p % 5 == 4: a(f"s_add_u32 s{sreg}, s{sreg}, 4096")
        a(f"buffer_load_dwordx4 {vr(regs[p], 4)}, v1, {wsr}, s{sreg} offen offset:{(p % 5 % 4) * 1024} sc1")
    def flush(regs):
        for p, r in enumerate(regs):
            a(f"ds_write_b128 v2, {vr(r, 4)} offset:{p*1024}")
            if p % 8 == 7: a("s_waitcnt lgkmcnt(4)")
        a("s_waitcnt lgkmcnt(0)")
    a(f"s_mul_i32 s32, s{sW}, 30720\nv_add_u32 v2, s32, v1")
    a(f"s_lshl_b32 s39, s{sW}, 1\ns_add_u32 s39, s39, 24"); wd_src(32, "s39")
    a("s_mul_i32 s33, s39, 5120\ns_add_u32 s39, s39, 1"); wd_src(42, "s39")
    a("s_waitcnt vmcnt(0)")
    st.at(1)
    a("s_barrier")
    def window(tag, poller, do_poll, burst):
        if not OPT['pollfirst']:
            burst()
            a(f"s_cmp_eq_u32 s{sW}, {poller}\ns_cbranch_scc0 {L(tag + '_end')}")
            do_poll()
            a.label(L(tag + "_end"))
            st.at(int(tag[-1]))
            a("s_barrier")
            return
        a(f"s_cmp_eq_u32 s{sW}, {poller}\ns_cselect_b32 s43, 1, 0\ns_cbranch_scc0 {L(tag + '_burst')}")
        do_poll()
        st.at(int(tag[-1]))
        a("s_barrier")
        a.label(L(tag + "_burst"))
        burst()
        a(f"s_cmp_eq_u32 s43, 1\ns_cbranch_scc1 {L(tag + '_end')}")
        st.at(int(tag[-1]))
        a("s_barrier")
        a.label(L(tag + "_end"))
    def burst2():
        dma_run("l_w5a", 5)
        a("s_mov_b32 s32, s42")
        dma_run("l_w5b", 5)
        for p in range(25, 30): stage(p, 51, regs5)
    window("l_win2", 0, lambda: poll(1, sGrp, 4), burst2)
    a("s_barrier\ns_barrier")
    st.at(3)
    regs4 = [ST + 4 * p for p in range(30)]
    a(f"s_cmp_eq_u32 s{sW}, 0\ns_cbranch_scc1 {L('l_late')}")
    flush(regs4)
    a(f"s_barrier\ns_branch {L('l_a3')}")
    a.label(L("l_late"))
    a("s_barrier")
    flush(regs4)
    a.label(L("l_a3"))
    window("l_win4", 3, lambda: poll(2, sRb256, 5), lambda: [stage(p, 46 + p // 5, regs5) for p in range(25)])
    for u in range(4):
        a(f"s_lshl_b32 s39, s{sW}, 1\ns_add_u32 s39, s39, {32 + (u // 2) * 8 + u % 2}"); wd_src(46 + u, "s39")
    a("s_waitcnt vmcnt(0)\ns_barrier")
    st.at(5)
    flush(regs5)
    a("s_barrier")
    window("l_win6", 0, lambda: poll(3, sGrp, 4), lambda: [stage(p, 46 + p // 5, regs4) for p in range(20)])
    a(f"s_mul_i32 s32, s{sW}, 10240\nv_add_u32 v2, s32, v1\ns_waitcnt vmcnt(0)")
    for g in range(0 if 'p5nobar' in OPT['abl'] else 2):
        a("s_barrier")
        for kh in range(0 if 'p5nowr' in OPT['abl'] else 2):
            for i in range(5):
                a(f"ds_write_b128 v2, {vr(ST + ((g*2+kh)*5+i)*4, 4)} offset:{g*40960 + kh*5120 + i*1024}")
        a("s_waitcnt lgkmcnt(0)")
    if 'p5nobar' not in OPT['abl']: a("s_barrier")
    (st2 if OPT['lst'] else st).end(1)
    a("s_endpgm")
```

```python
from asmlib import *
from layout import *
from k_attn import srd
from k_qkv import f2u, QSCALE, OOB, JOB, image_job_setup, image_job_load, tr_lane_addr, lds_transpose

NS, SLOT = 4, 32768
STAT = NS * SLOT
JSCR = STAT + 4096
WS = 8
sW, sRb, sCb, sMw, sNw, sC, sSrcX, sSrcW, sM0, sDelta, sRd, sT = 20, 21, 22, 23, 24, 25, 26, 27, 28, 29, 30, 31
sTau, sTj = (32, 33), (34, 35)
wsr = f"s[{WS}:{WS+3}]"


def ids(a):
    a(f"s_bfe_u32 s{sRb}, s2, 0x20001\ns_lshl_b32 s{sRb}, s{sRb}, 2\ns_bfe_u32 s{sT}, s2, 0x20003\ns_add_u32 s{sRb}, s{sRb}, s{sT}")
    a(f"s_and_b32 s{sCb}, s2, 1\ns_lshl_b32 s{sCb}, s{sCb}, 3\ns_lshr_b32 s{sT}, s2, 5\ns_add_u32 s{sCb}, s{sCb}, s{sT}")


def x_addr(a, row, half, dst, bases):
    a(f"v_bfe_u32 v4, v{row}, 1, 3\nv_xor_b32 v4, v4, v{half}\nv_lshlrev_b32 v5, 7, v{row}")
    for s in range(4):
        a(f"v_xor_b32 v6, {2*s}, v4\nv_lshl_add_u32 v6, v6, 4, v5")
        for i, b in enumerate(bases):
            a(f"s_lshl_b32 s{sT}, s{b}, 12\nv_add_u32 v{dst + 4*i + s}, s{sT}, v6")


def ring_step(a):
    a(f"s_add_u32 s{sRd}, s{sRd}, {SLOT}\ns_cmp_eq_u32 s{sRd}, {NS*SLOT}\ns_cselect_b32 s{sDelta}, s38, {SLOT}\ns_cselect_b32 s{sRd}, 0, s{sRd}")


def compute(a, L, st, fl="sc1", abl=()):
    ACC = 64
    acc = lambda j, i: ACC + (j * 2 + i) * 16
    FX = lambda p, i: 32 + p * 16 + i * 4
    FW = lambda p, j: 32 + p * 16 + 8 + j * 4
    WC, ONE = 128, 132
    vXA = lambda i, s: 8 + i * 4 + s
    vWA = lambda j: 16 + j

    def reads(p, s):
        out = [f"ds_read_b128 {vr(FX(p,i),4)}, v{vXA(i,s)}" for i in range(2)]
        for j in range(2):
            for h in range(2):
                out.append(f"ds_read_b64_tr_b16 {vr(FW(p,j)+2*h,2)}, v{vWA(j)} offset:{s*4096 + h*1024}")
        return out

    a(f"s_lshr_b32 s{sMw}, s{sW}, 1\ns_and_b32 s{sNw}, s{sW}, 1")
    for i in range(2):
        a(f"s_lshl_b32 s{sTau[i]}, s{sMw}, 1\ns_add_u32 s{sTau[i]}, s{sTau[i]}, {i}")
        a(f"s_xor_b32 s{sT}, s{sMw}, {i}\ns_lshl_b32 s{sTj[i]}, s{sNw}, 1\ns_add_u32 s{sTj[i]}, s{sTj[i]}, s{sT}")
    a("v_and_b32 v2, 31, v0\nv_lshrrev_b32 v3, 5, v0\nv_mov_b32 v7, v2")
    a(f"s_cmp_ge_u32 s{sCb}, 11\ns_cbranch_scc0 {L('norowperm')}")
    a("v_bfe_u32 v4, v0, 2, 1\nv_bfe_u32 v5, v0, 3, 1\nv_and_b32 v7, 0x13, v0\nv_lshl_or_b32 v7, v4, 3, v7\nv_lshl_or_b32 v7, v5, 2, v7")
    a.label(L("norowperm"))
    x_addr(a, 7, 3, 8, sTau)
    a("v_bfe_u32 v4, v0, 2, 2\nv_lshl_add_u32 v5, v3, 3, v4\nv_lshlrev_b32 v5, 8, v5\nv_add_u32 v5, 16384, v5")
    a("v_bfe_u32 v6, v0, 4, 1\nv_lshlrev_b32 v6, 1, v6\nv_lshl_add_u32 v6, v4, 2, v6\nv_and_b32 v26, 1, v0\nv_bfe_u32 v27, v0, 1, 1")
    for j in range(2):
        a(f"s_cmp_lt_u32 s{sTj[j]}, 3\ns_cselect_b32 s{sT}, 1, 0\ns_cmp_lt_u32 s{sCb}, 11\ns_cselect_b32 s{sT}, s{sT}, 0")
        a(f"s_cmp_eq_u32 s{sT}, 1\ns_cselect_b64 vcc, -1, 0\ns_lshl_b32 s{sT}, s{sTj[j]}, 2")
        a("v_cndmask_b32 v28, v27, v26, vcc\nv_cndmask_b32 v29, v26, v27, vcc")
        a(f"v_add3_u32 v28, v28, v6, s{sT}\nv_and_b32 v28, 15, v28\nv_lshl_add_u32 v28, v28, 4, v5\nv_lshl_add_u32 v{vWA(j)}, v29, 3, v28")
    for r in range(68): a(f"v_mov_b32 v{ACC+r}, 0")
    a(f"v_mov_b32 v{ONE}, 0x3f803f80\nv_mov_b32 v{ONE+1}, 0x3f803f80")
    for i in range(2):
        a(f"s_lshl_b32 s{sT}, s{sRb}, 2\ns_add_u32 s{sTau[i]}, s{sTau[i]}, s{sT}")
    a(f"s_mov_b32 s{sC}, 0\ns_mov_b32 s{sRd}, 0\ns_mov_b32 s38, {-(NS-1)*SLOT & 0xffffffff}")
    a(f"s_cmp_ge_u32 s{sCb}, 11\ns_cbranch_scc1 {L('noparam')}")
    for P in range(3):
        a(f"s_mul_i32 s{sT}, s{sCb}, 6\ns_add_u32 s{sT}, s{sT}, {2*P}")
        a(f"s_cmp_lt_u32 s{sT}, 32\ns_cselect_b32 s{44+P}, {f2u(QSCALE):#x}, 1.0")
        a(f"s_mov_b32 s39, {KV_HEAD}\ns_cselect_b32 s{48+P}, {Q_HEAD}, s39")
        a(f"s_cbranch_scc0 {L(f'pk{P}')}")
        for i in range(2):
            a(f"s_mul_i32 s{52+2*P+i}, s{sT}, {Q_HEAD}\ns_mul_i32 s39, s{sTau[i]}, 1280\ns_add_u32 s{52+2*P+i}, s{52+2*P+i}, s39")
            a(f"s_add_u32 s{58+2*P+i}, s{52+2*P+i}, 1024")
        a(f"s_branch {L(f'pd{P}')}")
        a.label(L(f"pk{P}"))
        a(f"s_mul_i32 s40, s{sT}, {KV_HEAD}\ns_add_u32 s40, s40, {(WS_KV - 32*KV_HEAD) & 0xffffffff}")
        a(f"s_cmp_lt_u32 s{sT}, 64\ns_cselect_b32 s40, s40, {OOB}")
        for i in range(2):
            a(f"s_lshr_b32 s39, s{sTau[i]}, 3\ns_mul_i32 s39, s39, {KV_CHUNK}\ns_add_u32 s39, s39, s40\ns_and_b32 s41, s{sTau[i]}, 7")
            a(f"s_lshl_b32 s42, s41, 10\ns_add_u32 s{52+2*P+i}, s39, s42")
            a(f"s_lshl_b32 s42, s41, 8\ns_add_u32 s39, s39, s42\ns_add_u32 s{58+2*P+i}, s39, {KV_K2}")
        a.label(L(f"pd{P}"))
    a.label(L("noparam"))
    st.l1(0)
    a("s_barrier")
    st.p1(0); st.l1(1)
    for r in reads(0, 0): a(r)
    a(f"s_cmp_ge_u32 s{sCb}, 11\ns_cbranch_scc1 {L('loopV')}")

    def loop(tag):
        a(".p2align 3")
        a.label(L("loop" + tag))
        for s in range(4):
            p = s % 2
            def big(j, i):
                x, w = vr(FX(p, i), 4), vr(FW(p, j), 4)
                if tag == "V": w, x = x, w
                a(f"v_mfma_f32_32x32x16_bf16 {vr(acc(j,i),16)}, {w}, {x}, {vr(acc(j,i),16)}")
            small = lambda h: None if 'nosmall' in abl else a(f"v_mfma_f32_4x4x4bf16_1k {vr(WC,4)}, {vr(ONE,2)}, {vr(FW(p,0)+2*h,2)}, {vr(WC,4)}")
            a("s_waitcnt lgkmcnt(0)")
            if s == 3: a("s_barrier")
            big(0, 0)
            if s == 3:
                ring_step(a)
                for r in [vXA(0,0), vXA(1,0), vWA(0), vWA(1)]: a(f"v_add_u32 v{r}, s{sDelta}, v{r}")
            rd = reads(1 - p, (s + 1) % 4)
            for r in rd[:4]: a(r)
            small(0)
            big(0, 1)
            for r in rd[4:]: a(r)
            small(1)
            big(1, 0)
            if s == 3:
                for i in range(2):
                    for s2 in range(1, 4): a(f"v_add_u32 v{vXA(i,s2)}, s{sDelta}, v{vXA(i,s2)}")
            big(1, 1)
        a(f"s_add_u32 s{sC}, s{sC}, 1\ns_cmp_lt_u32 s{sC}, 10\ns_cbranch_scc1 {L('loop'+tag)}")
        st.p1(1); st.l1(2)
        a(f"s_lshl_b32 s{sT}, s{sTj[0]}, 7\ns_add_u32 s{sT}, s{sT}, {STAT + 1536}\nv_lshl_add_u32 v7, v2, 2, s{sT}")
        a(f"v_permlane32_swap_b32 v{WC}, v{WC+1}\nv_add_f32 v{WC}, v{WC}, v{WC+1}")
        a(f"ds_write_b32 v7, v{WC}\ns_waitcnt lgkmcnt(0)\ns_barrier")

    loop("Q")
    CS, RS, MR = 136, (26, 28), (27, 29)
    for i in range(2):
        a(f"s_and_b32 s{sT}, s{sTau[i]}, 3\ns_lshl_b32 s{sT}, s{sT}, 7\ns_add_u32 s{sT}, s{sT}, {STAT}\nv_lshl_add_u32 v6, v2, 2, s{sT}")
        a(f"ds_read_b32 v{RS[i]}, v6\nds_read_b32 v{MR[i]}, v6 offset:512\nds_read_b32 v{32+i}, v6 offset:1024")
    for j in range(2):
        a(f"s_lshl_b32 s{sT}, s{sTj[j]}, 7\ns_add_u32 s{sT}, s{sT}, {STAT + 1536}\nv_lshl_add_u32 v7, v3, 4, s{sT}")
        for g in range(4): a(f"ds_read_b128 {vr(CS+16*j+4*g,4)}, v7 offset:{32*g}")
    a(f"v_lshlrev_b32 v4, 4, v0\nv_lshlrev_b32 v5, 3, v2\nv_lshlrev_b32 v7, 2, v2")
    a(f"s_lshl_b32 s39, s{sTau[0]}, 7\ns_add_u32 s39, s39, {WS_MUX}\ns_or_b32 s40, s{sCb}, s{sNw}\ns_cmp_eq_u32 s40, 0\ns_cselect_b32 s39, s39, {OOB}")
    a("s_waitcnt lgkmcnt(0)")
    for j in range(2):
        a(f"s_cmp_eq_u32 s{sTj[j]}, 1\ns_cselect_b32 s64, s45, s44\ns_cselect_b32 s68, s49, s48\ns_cselect_b32 s69, s54, s52\ns_cselect_b32 s70, s55, s53")
        a(f"s_cmp_eq_u32 s{sTj[j]}, 2\ns_cselect_b32 s64, s46, s64\ns_cselect_b32 s68, s50, s68\ns_cselect_b32 s69, s56, s69\ns_cselect_b32 s70, s57, s70")
        a(f"s_add_u32 s41, s69, s68\ns_add_u32 s42, s70, s68")
        a(f"s_cmp_eq_u32 s{sTj[j]}, 3\ns_cselect_b32 s65, s45, s64\ns_cselect_b32 s66, s46, s64")
        if j == 0:
            for i in range(2): a(f"buffer_store_dword v{32+i}, v7, {wsr}, s39 offen offset:{i*128} {fl}")
        for i in range(2):
            A_ = acc(j, i)
            a(f"v_mul_f32 v30, s64, v{RS[i]}\nv_mul_f32 v31, s64, v{MR[i]}")
            for g in range(4):
                if g in (1, 2): a(f"v_mul_f32 v30, s{64+g}, v{RS[i]}\nv_mul_f32 v31, s{64+g}, v{MR[i]}")
                for r in (0, 2):
                    q = A_ + 4 * g + r
                    a(f"v_pk_mul_f32 {vr(q,2)}, {vr(q,2)}, v[30:31] op_sel_hi:[1,0]")
                    a(f"v_pk_fma_f32 {vr(q,2)}, {vr(CS+16*j+4*g+r,2)}, v[30:31], {vr(q,2)} op_sel:[0,1,0] op_sel_hi:[1,1,1] neg_lo:[0,1,0] neg_hi:[0,1,0]")
            for r in range(8): a(f"v_cvt_pk_bf16_f32 v{A_+r}, v{A_+2*r}, v{A_+2*r+1}")
            a(f"s_cbranch_scc1 {L(f'rem{j}{i}')}")
            a(f"buffer_store_dwordx4 {vr(A_,4)}, v4, {wsr}, s{69+i} offen {fl}")
            a(f"buffer_store_dwordx4 {vr(A_+4,4)}, v4, {wsr}, s{41+i} offen {fl}")
            a(f"s_branch {L(f'std{j}{i}')}")
            a.label(L(f"rem{j}{i}"))
            for g in range(3):
                a(f"v_mad_u32_u24 v6, v3, s{48+g}, v5")
                a(f"buffer_store_dwordx2 {vr(A_+2*g,2)}, v6, {wsr}, s{58+2*g+i} offen {fl}")
            a.label(L(f"std{j}{i}"))
    a(f"s_branch {L('p1done')}")

    loop("V")
    RSV, MRV, CSV = 32, 136, (26, 28)
    for i in range(2):
        a(f"s_and_b32 s{sT}, s{sTau[i]}, 3\ns_lshl_b32 s{sT}, s{sT}, 7\ns_add_u32 s{sT}, s{sT}, {STAT}\nv_lshl_add_u32 v6, v3, 5, s{sT}")
        for q in range(4):
            off = (q // 2) * 64 + (q % 2) * 16
            a(f"ds_read_b128 {vr(RSV+16*i+4*q,4)}, v6 offset:{off}\nds_read_b128 {vr(MRV+16*i+4*q,4)}, v6 offset:{512+off}")
        if i == 0: a("s_waitcnt lgkmcnt(4)")
    a(f"s_mov_b32 s40, 3277\ns_mov_b32 s41, {KV_HEAD - 640}")
    for j in range(2):
        a(f"s_lshl_b32 s{sT}, s{sTj[j]}, 7\ns_add_u32 s{sT}, s{sT}, {STAT + 1536}\nv_lshl_add_u32 v7, v2, 2, s{sT}\nds_read_b32 v{CSV[j]}, v7")
        a(f"s_lshl_b32 s39, s{sCb}, 2\ns_add_u32 s39, s39, s{sTj[j]}\ns_sub_u32 s39, s39, 44\ns_lshl_b32 s39, s39, 5")
        a("v_add_u32 v4, s39, v2\nv_mul_u32_u24 v5, s40, v4\nv_lshrrev_b32 v5, 16, v5")
        a("v_mul_u32_u24 v6, 20, v5\nv_sub_u32 v6, v4, v6\nv_bfe_u32 v6, v6, 3, 1\nv_xor_b32 v6, v6, v3")
        a(f"v_lshlrev_b32 v4, 5, v4\nv_lshl_add_u32 v4, v6, 4, v4\nv_mad_u32_u24 v{30+j}, v5, s41, v4")
    for i in range(2):
        a(f"s_lshr_b32 s39, s{sTau[i]}, 3\ns_mul_i32 s39, s39, {KV_CHUNK}\ns_and_b32 s42, s{sTau[i]}, 7\ns_mul_i32 s42, s42, 1280")
        a(f"s_add_u32 s39, s39, s42\ns_add_u32 s{44+i}, s39, {WS_KV + KV_V}")
    a("s_waitcnt lgkmcnt(0)")
    for j in range(2):
        for i in range(2):
            A_ = acc(j, i)
            for r in range(0, 16, 2):
                a(f"v_pk_mul_f32 {vr(A_+r,2)}, {vr(A_+r,2)}, {vr(RSV+16*i+r,2)}")
                a(f"v_pk_fma_f32 {vr(A_+r,2)}, {vr(MRV+16*i+r,2)}, {vr(CSV[j],2)}, {vr(A_+r,2)} op_sel_hi:[1,0,1] neg_lo:[1,0,0] neg_hi:[1,0,0]")
            for r in range(8): a(f"v_cvt_pk_bf16_f32 v{A_+r}, v{A_+2*r}, v{A_+2*r+1}")
            a(f"buffer_store_dwordx4 {vr(A_,4)}, v{30+j}, {wsr}, s{44+i} offen {fl}")
            a(f"buffer_store_dwordx4 {vr(A_+4,4)}, v{30+j}, {wsr}, s{44+i} offen offset:640 {fl}")
    a.label(L("p1done"))


def stats(a, L, name, own_slots, abl=()):
    a(f"s_load_dwordx2 s[40:41], s[0:1], {ARG_DBG}")
    a(f"s_cmp_eq_u32 s{sW}, 4\ns_cbranch_scc0 {L('nozero')}")
    a("v_lshlrev_b32 v2, 4, v0")
    for r in range(4): a(f"v_mov_b32 v{4+r}, 0")
    slots = own_slots()
    a("s_mov_b64 exec, 0xff")
    for ph, sl in enumerate(slots):
        a(f"s_lshl_b32 s39, s{sl}, 7\ns_add_u32 s39, s39, {WS_FLG + ph * 32768}")
        a(f"buffer_store_dwordx4 v[4:7], v2, {wsr}, s39 offen sc1")
    a("s_mov_b64 exec, -1")
    a.label(L("nozero"))
    a(f"s_cmp_eq_u32 s{sW}, 5\ns_cbranch_scc0 {L('nopf')}")
    a(f"s_getpc_b64 s[42:43]\n{L('pc')}:\ns_sub_u32 s42, s42, {L('pc')} - {name}\ns_subb_u32 s43, s43, 0")
    a(f"s_lshr_b32 s39, s2, 3\ns_min_u32 s39, s39, ({name}_codeend - {name}) / 1024 - 1\ns_lshl_b32 s39, s39, 10\ns_add_u32 s42, s42, s39\ns_addc_u32 s43, s43, 0")
    a("v_lshlrev_b32 v2, 4, v0\nv_mov_b32 v3, s43\nv_add_co_u32 v2, vcc, s42, v2\ns_nop 1\nv_addc_co_u32 v3, vcc, 0, v3, vcc")
    a("global_load_dwordx4 v[60:63], v[2:3], off")
    a.label(L("nopf"))
    a(f"v_and_b32 v2, 31, v0\nv_lshrrev_b32 v3, 5, v0\ns_sub_u32 s32, s{sW}, 4")
    x_addr(a, 2, 3, 8, (32,))
    XS, XQ, ONE = 40, 48, 38
    for r in range(16): a(f"v_mov_b32 v{XS+r}, 0")
    a(f"v_mov_b32 v{ONE}, 0x3f803f80\nv_mov_b32 v{ONE+1}, 0x3f803f80")
    a(f"s_mov_b32 s{sC}, 0\ns_mov_b32 s{sRd}, 0\ns_mov_b32 s38, {-(NS-1)*SLOT & 0xffffffff}")
    a("s_waitcnt lgkmcnt(0)")
    if 'nosprio' not in abl: a("s_setprio 1")
    a.label(L("sloop"))
    a("s_barrier")
    for s in range(4): a(f"ds_read_b128 {vr(16+4*s,4)}, v{8+s}")
    ring_step(a)
    for s in range(4): a(f"v_add_u32 v{8+s}, s{sDelta}, v{8+s}")
    for s in range(4):
        a(f"s_waitcnt lgkmcnt({3-s})")
        for h in range(2):
            q = vr(16 + 4 * s + 2 * h, 2)
            a(f"v_mfma_f32_4x4x4bf16_1k {vr(XS+4*h,4)}, {vr(ONE,2)}, {q}, {vr(XS+4*h,4)}")
            a(f"v_mfma_f32_4x4x4bf16_1k {vr(XQ+4*h,4)}, {q}, {q}, {vr(XQ+4*h,4)}")
    a(f"s_lshl_b32 s39, s{sC}, 4\ns_add_u32 s39, s39, s{sW}\ns_cmp_eq_u32 s39, 4\ns_cbranch_scc0 {L('nocount')}")
    a("s_and_b32 s39, s2, 15\ns_lshl_b32 s39, s39, 4\nv_mov_b32 v36, 1\nv_mov_b32 v37, 0")
    srd(a, 12, 40, 256)
    a("s_mov_b64 exec, 1\ns_waitcnt vmcnt(0)\nbuffer_atomic_add v36, v37, s[12:15], s39 offen sc1\ns_mov_b64 exec, -1")
    a.label(L("nocount"))
    a(f"s_add_u32 s{sC}, s{sC}, 1\ns_cmp_lt_u32 s{sC}, 10\ns_cbranch_scc1 {L('sloop')}")
    a("v_and_b32 v4, 3, v0\nv_cmp_eq_u32 vcc, 1, v4\nv_cmp_eq_u32 s[42:43], 2, v4\nv_cmp_eq_u32 s[44:45], 3, v4\ns_nop 1")
    for r in range(4): a(f"v_add_f32 v{XQ+r}, v{XQ+r}, v{XQ+4+r}")
    a(f"v_add_f32 v12, v{XS}, v{XS+4}\nv_cndmask_b32 v14, v{XQ}, v{XQ+1}, vcc\nv_cndmask_b32 v14, v14, v{XQ+2}, s[42:43]\nv_cndmask_b32 v14, v14, v{XQ+3}, s[44:45]")
    a("v_mov_b32 v13, v12\nv_mov_b32 v15, v14\ns_barrier")
    a(f"s_lshl_b32 s32, s32, 7\ns_add_u32 s32, s32, {STAT}\nv_lshl_add_u32 v6, v2, 2, s32")
    a("v_permlane32_swap_b32 v12, v13\nv_permlane32_swap_b32 v14, v15\nv_add_f32 v12, v12, v13\nv_add_f32 v14, v14, v15")
    a(f"v_mul_f32 v12, {f2u(1/640):#x}, v12\nv_mul_f32 v14, {f2u(1/640):#x}, v14")
    a(f"v_fma_f32 v14, -v12, v12, v14\nv_max_f32 v14, 0, v14\nv_add_f32 v14, {f2u(1e-5):#x}, v14\nv_rsq_f32 v14, v14")
    a("ds_write_b32 v6, v12 offset:1024\nv_mul_f32 v13, v12, v14\nds_write_b32 v6, v14\nds_write_b32 v6, v13 offset:512")
    a("s_waitcnt vmcnt(0) lgkmcnt(0)\ns_setprio 0\ns_barrier")


def loader(a, L, st, spin, first=2, job_at=9):
    sX, sWq = 12, 16
    vDX = lambda k: 18 + k
    vDW = lambda k: 22 + k
    a("v_lshrrev_b32 v2, 3, v0\nv_mul_u32_u24 v2, 1280, v2\nv_lshrrev_b32 v3, 4, v0\nv_and_b32 v4, 7, v0\nv_xor_b32 v4, v4, v3")
    a(f"v_lshl_add_u32 v{vDX(0)}, v4, 4, v2\nv_xor_b32 v4, 4, v4\nv_lshl_add_u32 v{vDX(1)}, v4, 4, v2")
    a(f"v_add_u32 v{vDX(1)}, {8*1280-1024}, v{vDX(1)}\nv_add_u32 v{vDX(2)}, {2*(8*1280-1024)}, v{vDX(0)}\nv_add_u32 v{vDX(3)}, {2*(8*1280-1024)}, v{vDX(1)}")
    a("v_lshlrev_b32 v4, 2, v3\nv_sub_u32 v4, v0, v4\nv_and_b32 v4, 15, v4")
    a(f"s_lshl_b32 s{sSrcX}, s{sRb}, 2\ns_add_u32 s{sSrcX}, s{sSrcX}, s{sW}\ns_mul_i32 s{sSrcX}, s{sSrcX}, {32*1280}")
    a(f"s_mul_i32 s{sSrcW}, s{sW}, {16*3840}")
    a(f"s_cmp_ge_u32 s{sCb}, 11\ns_cbranch_scc1 {L('vsrc')}")
    a("v_lshrrev_b32 v5, 2, v4\nv_add_u32 v5, v4, v5\nv_bfe_u32 v6, v4, 1, 1\nv_add_u32 v5, v5, v6")
    a("v_mul_u32_u24 v6, 5, v4\nv_subrev_u32 v6, 58, v6\nv_min_i32 v6, 15, v6\nv_cmp_le_u32 vcc, 12, v4")
    a(f"s_mul_i32 s{sT}, s{sCb}, 240\ns_add_u32 s{sSrcW}, s{sSrcW}, s{sT}")
    a(f"v_cndmask_b32 v4, v5, v6, vcc\ns_branch {L('srcdone')}")
    a.label(L("vsrc"))
    a(f"s_lshl_b32 s{sT}, s{sCb}, 8\ns_add_u32 s{sSrcW}, s{sSrcW}, s{sT}\ns_sub_u32 s{sSrcW}, s{sSrcW}, {11*256-2560}")
    a.label(L("srcdone"))
    a(f"v_mul_u32_u24 v3, 3840, v3\nv_lshl_add_u32 v{vDW(0)}, v4, 4, v3")
    for k in range(1, 4): a(f"v_add_u32 v{vDW(k)}, {k*(4*3840-1024)}, v{vDW(0)}")
    a(f"s_lshl_b32 s{sM0}, s{sW}, 12")
    a("s_bfe_u32 s54, s2, 0x20003\ns_mul_i32 s54, s54, 5\ns_add_u32 s54, s54, 1\ns_lshr_b32 s54, s54, 1\ns_lshr_b32 s55, s2, 5\ns_add_u32 s54, s54, s55")
    a("s_cmp_ge_u32 s54, 10\ns_cselect_b32 s55, 10, 0\ns_sub_u32 s54, s54, s55")
    a(f"s_lshl_b32 s55, s54, 7\ns_add_u32 s{sSrcX}, s{sSrcX}, s55\ns_mul_i32 s55, s54, {64*3840}\ns_add_u32 s{sSrcW}, s{sSrcW}, s55")
    st.l1(0)
    a("s_waitcnt lgkmcnt(0)")
    srd(a, sX, 40, S * D * 2)
    srd(a, sWq, 42, D * 3 * D * 2)
    def issue(slot_sgpr):
        a(f"s_mov_b32 m0, s{slot_sgpr}\ns_add_u32 s{sT}, s{slot_sgpr}, 16384")
        for k in range(4): a(f"buffer_load_dwordx4 v{vDX(k)}, s[{sX}:{sX+3}], s{sSrcX} offen offset:{k*1024} lds")
        a(f"s_mov_b32 m0, s{sT}\ns_add_u32 s{sSrcX}, s{sSrcX}, 128")
        for k in range(4): a(f"buffer_load_dwordx4 v{vDW(k)}, s[{sWq}:{sWq+3}], s{sSrcW} offen offset:{k*1024} lds")
        a(f"s_add_u32 s{sSrcW}, s{sSrcW}, {64*3840}\ns_add_u32 s54, s54, 1\ns_cmp_eq_u32 s54, 10")
        a(f"s_cselect_b32 s55, 1280, 0\ns_cselect_b32 s53, {640*3840}, 0\ns_sub_u32 s{sSrcX}, s{sSrcX}, s55\ns_sub_u32 s{sSrcW}, s{sSrcW}, s53")
        a(f"s_add_u32 s{slot_sgpr}, s{slot_sgpr}, {SLOT}\ns_and_b32 s{slot_sgpr}, s{slot_sgpr}, {NS*SLOT - 1}")
    assert first == 2 and NS == 4
    issue(sM0); issue(sM0)
    srd(a, WS, 4, WS_END)
    a(f"s_load_dwordx2 s[44:45], s[0:1], {ARG_WO}\ns_load_dwordx2 s[56:57], s[0:1], {ARG_WD}\ns_load_dwordx2 s[36:37], s[0:1], {ARG_DBG}")
    st.l1(1)
    a("s_waitcnt vmcnt(8)")
    st.l1(2)
    a("s_barrier")
    issue(sM0)
    a(f"s_mov_b32 s{sC}, 7")
    a.label(L("ldloop"))
    issue(sM0)
    a(f"s_waitcnt vmcnt(16)\ns_barrier\ns_sub_u32 s{sC}, s{sC}, 1\ns_cmp_lg_u32 s{sC}, 0\ns_cbranch_scc1 {L('ldloop')}")
    a("s_waitcnt lgkmcnt(0)")
    image_job_setup(a, L, sW)
    srd(a, 40, 44, D * D * 2)
    a(f"s_lshl_b32 s46, s2, 2\ns_add_u32 s46, s46, s{sW}\ns_mul_i32 s47, s46, 1280\nv_cmp_gt_u32 vcc, 40, v0\nv_lshlrev_b32 v1, 5, v0\nv_mov_b32 v2, {OOB}")
    a("v_cndmask_b32 v1, v2, v1, vcc")
    a("s_waitcnt vmcnt(8)\ns_barrier")
    image_job_load(a)
    a("buffer_load_dwordx4 v[32:35], v1, s[40:43], s47 offen\nbuffer_load_dwordx4 v[36:39], v1, s[40:43], s47 offen offset:16")
    a("s_waitcnt vmcnt(7)\ns_barrier\ns_barrier\ns_barrier")
    st.l1(3)
    a("s_mul_i32 s48, s46, 3277\ns_lshr_b32 s48, s48, 16\ns_mul_i32 s49, s48, 20\ns_sub_u32 s49, s46, s49\ns_lshr_b32 s50, s48, 4\ns_mul_i32 s50, s50, 1280\ns_and_b32 s51, s48, 1")
    a(f"s_cmp_ge_u32 s49, 16\ns_cbranch_scc1 {L('tblrem')}")
    a("s_bfe_u32 s52, s48, 0x30001\ns_add_u32 s52, s52, 2\ns_lshl_b32 s52, s52, 7\ns_lshl_b32 s51, s51, 6\ns_add_u32 s52, s52, s51")
    a(f"s_lshr_b32 s51, s49, 3\ns_lshl_b32 s51, s51, 5\ns_add_u32 s52, s52, s51\ns_and_b32 s51, s49, 7\ns_branch {L('tbldone')}")
    a.label(L("tblrem"))
    a("s_bfe_u32 s52, s48, 0x10003\ns_lshl_b32 s52, s52, 7\ns_bfe_u32 s53, s48, 0x20001\ns_lshl_b32 s53, s53, 5\ns_add_u32 s52, s52, s53")
    a("s_lshl_b32 s51, s51, 2\ns_add_u32 s51, s51, s49\ns_sub_u32 s51, s51, 16")
    a.label(L("tbldone"))
    a(f"s_lshl_b32 s51, s51, 1\ns_add_u32 s52, s52, s51\ns_add_u32 s52, s52, s50\ns_add_u32 s52, s52, {WS_TBL}")
    a(f"s_cmp_lt_u32 s46, 640\ns_cselect_b32 s62, s52, {OOB}")
    a(f"s_mul_i32 s66, s{sW}, 5120\ns_add_u32 s66, s66, {JSCR}\nv_lshlrev_b32 v1, 4, v0\nv_add_u32 v13, s66, v1")
    tr_lane_addr(a, 160, 14, 66)
    a(f"s_cmp_eq_u32 s{sW}, 0\ns_cbranch_scc0 {L('nozcheck')}")
    srd(a, 12, 36, 256)
    a("s_mov_b64 exec, 0xffff")
    spin("z", "buffer_load_dword v8, v1, s[12:15], 0 offen sc1", "", 16)
    a.label(L("nozcheck"))
    a("s_waitcnt vmcnt(2)")
    st.l1(4)
    lds_transpose(a, [JOB + 4 * i for i in range(5)], 13, 14, 1280)
    a("s_waitcnt vmcnt(0)")
    for r in range(8): a(f"v_lshlrev_b32 v{40+2*r}, 16, v{32+r}\nv_and_b32 v{41+2*r}, 0xffff0000, v{32+r}")
    for w_ in (8, 4, 2, 1):
        for r in range(w_): a(f"v_add_f32 v{40+r}, v{40+r}, v{40+w_+r}")
    a("s_nop 1")
    for sh in (1, 2, 4, 8):
        a(f"v_add_f32_dpp v40, v40, v40 row_shr:{sh} row_mask:0xf bank_mask:0xf bound_ctrl:1\ns_nop 1")
    a("v_readlane_b32 s48, v40, 15\nv_readlane_b32 s49, v40, 31\nv_readlane_b32 s50, v40, 47\ns_nop 1")
    a(f"v_mov_b32 v40, s48\nv_add_f32 v40, s49, v40\nv_add_f32 v40, s50, v40\nv_mul_f32 v40, {f2u(1/640):#x}, v40")
    a("v_cvt_pk_bf16_f32 v41, v40, v40\nv_and_b32 v42, 0xffff0000, v41\nv_sub_f32 v42, v40, v42\nv_cvt_pk_bf16_f32 v42, v42, v42\nv_mov_b32 v43, 0")


def job_stores(a):
    for j in range(4):
        a(f"buffer_store_dwordx4 {vr(JOB+4*j,4)}, v1, {wsr}, s61 offen offset:{j*1024} sc1")
    a(f"s_add_u32 s61, s61, 4096\nbuffer_store_dwordx4 {vr(JOB+16,4)}, v1, {wsr}, s61 offen sc1\ns_mov_b64 exec, 1")
    a(f"buffer_store_short v41, v43, {wsr}, s62 offen sc1\nbuffer_store_short v42, v43, {wsr}, s62 offen offset:16 sc1\ns_mov_b64 exec, -1")
    return 7
```

```python
from asmlib import *
from layout import *
from k_attn import srd
import struct

def f2u(x): return struct.unpack("<I", struct.pack("<f", x))[0]
QSCALE = 1.4426950408889634 / 20 ** 0.5
OOB = 0x40000000

NSTAMP = 4
def stamp_begin(a, on):
    if on:
        a(f"s_load_dwordx2 s[94:95], s[0:1], {ARG_WS}\ns_memtime s[78:79]\ns_memrealtime s[90:91]")
        for k in range(NSTAMP): a(f"s_mov_b32 s{80+2*k}, 0")
def stamp_at(a, on, k):
    if on: a(f"s_memtime s[{80+2*k}:{81+2*k}]")
def stamp_end(a, on, exit_label, wg=77, sW=20):
    if not on: return
    a("s_memtime s[96:97]\ns_waitcnt vmcnt(0)\ns_memtime s[88:89]\ns_memrealtime s[92:93]\ns_waitcnt lgkmcnt(0)")
    a(f"s_lshl_b32 s3, s2, 3\ns_add_u32 s3, s3, s{sW}\ns_lshl_b32 s3, s3, 5\ns_add_u32 s3, s3, {WS_TL + on[1] * 65536}")
    a("v_mov_b32 v4, s90\nv_mov_b32 v5, s92\nv_mov_b32 v1, s3")
    for k in range(NSTAMP): a(f"s_sub_u32 s{80+2*k}, s{80+2*k}, s78\nv_mov_b32 v{6+k}, s{80+2*k}")
    a("s_sub_u32 s96, s96, s78\nv_mov_b32 v10, s96\ns_sub_u32 s88, s88, s78\nv_mov_b32 v11, s88")
    a("s_mov_b64 exec, 1\nglobal_store_dwordx4 v1, v[4:7], s[94:95]\nglobal_store_dwordx4 v1, v[8:11], s[94:95] offset:16")

JOB = 64

def swap23(a, src, dst, t0=8, t1=9):
    a(f"v_bfe_u32 v{t0}, v{src}, 2, 1\nv_bfe_u32 v{t1}, v{src}, 3, 1\nv_and_b32 v{dst}, 0x13, v{src}\nv_lshl_or_b32 v{dst}, v{t0}, 3, v{dst}\nv_lshl_or_b32 v{dst}, v{t1}, 2, v{dst}")

def image_job_setup(a, L, sW):
    a(f"s_and_b32 s58, s2, 31\ns_lshl_b32 s59, s{sW}, 5\ns_add_u32 s58, s58, s59\ns_lshr_b32 s59, s2, 5")
    a(f"s_mul_i32 s60, s58, 40960\ns_add_u32 s61, s58, 20\ns_mov_b32 s62, 8\ns_mov_b32 s63, 4\ns_mov_b32 s64, 0\ns_mov_b32 s65, 0")
    a(f"s_mov_b32 s68, s56\ns_mov_b32 s69, s57\ns_mov_b32 s70, {DF*D*2}")
    a(f"s_cmp_lt_u32 s58, 48\ns_cbranch_scc1 {L('job')}")
    a(f"s_mov_b32 s68, s44\ns_mov_b32 s69, s45\ns_mov_b32 s70, {D*D*2}")
    a("s_sub_u32 s61, s58, 48\ns_mul_i32 s60, s61, 51200\ns_lshr_b32 s65, s61, 3\ns_lshl_b32 s65, s65, 1\ns_add_u32 s61, s61, s65\ns_add_u32 s61, s61, 2\ns_mov_b32 s64, 4\ns_mov_b32 s65, 0")
    a(f"s_cmp_lt_u32 s58, 64\ns_cbranch_scc1 {L('job')}")
    a(f"s_sub_u32 s61, s58, 64\ns_mul_i32 s60, s61, {160*1280}\ns_lshr_b32 s65, s61, 1\ns_lshl_b32 s65, s65, 3\ns_add_u32 s61, s61, s65")
    a("s_mov_b32 s62, 40\ns_mov_b32 s63, 20\ns_mov_b32 s64, 0\ns_mov_b32 s65, 16")
    a.label(L("job"))
    a("s_and_b32 s69, s69, 0xffff\ns_mov_b32 s71, 0x20000\ns_mul_i32 s66, s59, 160\ns_add_u32 s60, s60, s66")
    a(f"s_mul_i32 s61, s61, 5120\ns_mul_i32 s66, s59, {IMG_CB}\ns_add_u32 s61, s61, s66\ns_add_u32 s61, s61, {WS_IMG}")
    a(f"s_cmp_lt_u32 s58, 68\ns_cselect_b32 s60, s60, {OOB}\ns_cselect_b32 s61, s61, {OOB}\ns_mov_b32 s66, 6554")
    for i in range(5):
        a(f"v_add_u32 v2, {64*i}, v0\nv_mul_u32_u24 v3, s66, v2\nv_lshrrev_b32 v3, 16, v3\nv_mul_u32_u24 v6, 10, v3\nv_sub_u32 v6, v2, v6")
        swap23(a, 3, 7)
        a("v_lshrrev_b32 v10, 3, v7\nv_mul_u32_u24 v10, s62, v10\nv_mad_u32_u24 v10, v9, s63, v10\nv_lshrrev_b32 v11, 4, v7\nv_mad_u32_u24 v10, v11, s64, v10")
        a(f"v_and_b32 v11, 3, v7\nv_add3_u32 v10, v10, v11, s65\nv_mul_u32_u24 v10, 1280, v10\nv_lshl_add_u32 v{JOB+20+i}, v6, 4, v10")

def image_job_load(a):
    for i in range(5):
        a(f"buffer_load_dwordx4 {vr(JOB+4*i, 4)}, v{JOB+20+i}, s[68:71], s60 offen")

def tr_lane_addr(a, stride, dst, base_sgpr):
    a("v_bfe_u32 v10, v0, 2, 2\nv_bfe_u32 v11, v0, 4, 1\nv_lshl_add_u32 v10, v11, 2, v10\nv_lshrrev_b32 v11, 5, v0\nv_lshl_add_u32 v10, v11, 4, v10")
    a(f"v_mul_u32_u24 v10, {stride}, v10\nv_and_b32 v11, 3, v0\nv_lshl_add_u32 v10, v11, 3, v10\nv_add_u32 v{dst}, s{base_sgpr}, v10")

def lds_transpose(a, regs, vwr, vrd, half):
    for i, r in enumerate(regs): a(f"ds_write_b128 v{vwr}, {vr(r,4)} offset:{i*1024}")
    a("s_waitcnt lgkmcnt(0)")
    for j, r in enumerate(regs):
        for h in range(2): a(f"ds_read_b64_tr_b16 {vr(r+2*h,2)}, v{vrd} offset:{h*half + j*32}")
    a("s_waitcnt lgkmcnt(0)")

def image_job_store(a, sW, sWS, scratch, flags):
    a(f"s_mul_i32 s66, s{sW}, 5120\ns_add_u32 s66, s66, {scratch}\nv_lshlrev_b32 v12, 4, v0\nv_add_u32 v13, s66, v12")
    tr_lane_addr(a, 160, 14, 66)
    a("s_waitcnt vmcnt(0)")
    lds_transpose(a, [JOB + 4 * i for i in range(5)], 13, 14, 1280)
    for j in range(4):
        a(f"buffer_store_dwordx4 {vr(JOB+4*j,4)}, v12, s[{sWS}:{sWS+3}], s61 offen offset:{j*1024} {flags}")
    a(f"s_add_u32 s61, s61, 4096\nbuffer_store_dwordx4 {vr(JOB+16,4)}, v12, s[{sWS}:{sWS+3}], s61 offen {flags}")

def gen_qkv(a, name="qkv_kernel", NS=4, stamp=False, st_flags="", stamp_wg=77, abl=(), first=2, pf=0, side_at=3, job_at=7, job_flags='sc1', code_pf='fused_kernel', job=True, rot=True):
    SLOT = 32768
    ACC = 64
    acc = lambda j, i: ACC + (j * 2 + i) * 16
    FX = lambda p, i: 32 + p * 16 + i * 4
    FW = lambda p, j: 32 + p * 16 + 8 + j * 4
    XS, XQ, WC, ONE = 128, 132, 136, 140
    vXA = lambda i, s: 8 + i * 4 + s
    vWA = lambda j: 16 + j
    vDX = lambda k: 18 + k
    vDW = lambda k: 22 + k
    sX, sWq, sWS = 8, 12, 16
    sW, sRb, sCb, sMw, sNw, sC = 20, 21, 22, 23, 24, 25
    sSrcX, sSrcW, sM0, sDelta, sRd, sT = 26, 27, 28, 29, 30, 31
    sTau = (32, 33)
    sTj = (34, 35)
    L = lambda s: f"{name}_{s}"

    def reads(p, s):
        out = []
        for i in range(2):
            out.append(f"ds_read_b128 {vr(FX(p,i),4)}, v{vXA(i,s)}")
        for j in range(2):
            for h in range(2):
                out.append(f"ds_read_b64_tr_b16 {vr(FW(p,j)+2*h,2)}, v{vWA(j)} offset:{s*4096 + h*1024}")
        return out

    def params():
        for P in range(3):
            a(f"s_mul_i32 s{sT}, s{sCb}, 6\ns_add_u32 s{sT}, s{sT}, {2*P}")
            a(f"s_cmp_lt_u32 s{sT}, 32\ns_cselect_b32 s{44+P}, {f2u(QSCALE):#x}, 1.0")
            a(f"s_mov_b32 s39, {KV_HEAD}\ns_cselect_b32 s{48+P}, {Q_HEAD}, s39")
            a(f"s_cbranch_scc0 {L(f'pk{P}')}")
            for i in range(2):
                a(f"s_mul_i32 s{52+2*P+i}, s{sT}, {Q_HEAD}\ns_mul_i32 s39, s{sTau[i]}, 1280\ns_add_u32 s{52+2*P+i}, s{52+2*P+i}, s39")
                a(f"s_add_u32 s{58+2*P+i}, s{52+2*P+i}, 1024")
            a(f"s_branch {L(f'pd{P}')}")
            a.label(L(f"pk{P}"))
            a(f"s_mul_i32 s40, s{sT}, {KV_HEAD}\ns_add_u32 s40, s40, {(WS_KV - 32*KV_HEAD) & 0xffffffff}")
            a(f"s_cmp_lt_u32 s{sT}, 64\ns_cselect_b32 s40, s40, {OOB}")
            for i in range(2):
                a(f"s_lshr_b32 s39, s{sTau[i]}, 3\ns_mul_i32 s39, s39, {KV_CHUNK}\ns_add_u32 s39, s39, s40\ns_and_b32 s41, s{sTau[i]}, 7")
                a(f"s_lshl_b32 s42, s41, 10\ns_add_u32 s{52+2*P+i}, s39, s42")
                a(f"s_lshl_b32 s42, s41, 8\ns_add_u32 s39, s39, s42\ns_add_u32 s{58+2*P+i}, s39, {KV_K2}")
            a.label(L(f"pd{P}"))

    def sweep_in():
        a("s_waitcnt lgkmcnt(0)")
        srd(a, sX, 4, S * D * 2)
        srd(a, sWq, 6, D * 3 * D * 2)
        a(f"s_lshl_b32 s{sT}, s2, 2\ns_add_u32 s{sT}, s{sT}, s{sW}\ns_mul_i32 s39, s{sT}, 2560\ns_mul_i32 s40, s{sT}, 2400\nv_lshlrev_b32 v1, 4, v0")
        for k in range(3):
            a(f"buffer_load_dwordx4 {vr(144+8*k,4)}, v1, s[{sX}:{sX+3}], s39 offen offset:{k*1024}")
            a(f"buffer_load_dwordx4 {vr(148+8*k,4)}, v1, s[{sWq}:{sWq+3}], s40 offen offset:{k*1024}")

    a(f".p2align 8\n.type {name},@function\n{name}:")
    a(f"s_cmp_ge_u32 s2, 256\ns_cbranch_scc1 {L('exit')}")
    a(f"s_load_dwordx4 s[4:7], s[0:1], {ARG_X}\ns_load_dwordx2 s[36:37], s[0:1], {ARG_WS}\ns_load_dwordx2 s[44:45], s[0:1], {ARG_WO}\ns_load_dwordx2 s[56:57], s[0:1], {ARG_WD}")
    stamp_begin(a, stamp)
    a(f"v_lshrrev_b32 v1, 6, v0\nv_and_b32 v0, 63, v0\nv_readfirstlane_b32 s{sW}, v1")
    a(f"s_bfe_u32 s{sRb}, s2, 0x20001\ns_lshl_b32 s{sRb}, s{sRb}, 2\ns_bfe_u32 s{sT}, s2, 0x20003\ns_add_u32 s{sRb}, s{sRb}, s{sT}")
    a(f"s_and_b32 s{sCb}, s2, 1\ns_lshl_b32 s{sCb}, s{sCb}, 3\ns_lshr_b32 s{sT}, s2, 5\ns_add_u32 s{sCb}, s{sCb}, s{sT}")
    a(f"s_cmp_lt_u32 s{sW}, 4\ns_cbranch_scc1 {L('compute')}")
    a(f"s_and_b32 s{sW}, s{sW}, 3")
    a(f"v_lshrrev_b32 v2, 3, v0\nv_mul_u32_u24 v2, 1280, v2\nv_lshrrev_b32 v3, 4, v0\nv_and_b32 v4, 7, v0\nv_xor_b32 v4, v4, v3")
    a(f"v_lshl_add_u32 v{vDX(0)}, v4, 4, v2\nv_xor_b32 v4, 4, v4\nv_lshl_add_u32 v{vDX(1)}, v4, 4, v2")
    a(f"v_add_u32 v{vDX(1)}, {8*1280-1024}, v{vDX(1)}\nv_add_u32 v{vDX(2)}, {2*(8*1280-1024)}, v{vDX(0)}\nv_add_u32 v{vDX(3)}, {2*(8*1280-1024)}, v{vDX(1)}")
    a(f"v_lshlrev_b32 v4, 2, v3\nv_sub_u32 v4, v0, v4\nv_and_b32 v4, 15, v4")
    a(f"s_lshl_b32 s{sSrcX}, s{sRb}, 2\ns_add_u32 s{sSrcX}, s{sSrcX}, s{sW}\ns_mul_i32 s{sSrcX}, s{sSrcX}, {32*1280}")
    a(f"s_mul_i32 s{sSrcW}, s{sW}, {16*3840}")
    a(f"s_cmp_ge_u32 s{sCb}, 11\ns_cbranch_scc1 {L('vsrc')}")
    a(f"v_lshrrev_b32 v5, 2, v4\nv_add_u32 v5, v4, v5\nv_bfe_u32 v6, v4, 1, 1\nv_add_u32 v5, v5, v6")
    a(f"v_mul_u32_u24 v6, 5, v4\nv_subrev_u32 v6, 58, v6\nv_min_i32 v6, 15, v6\nv_cmp_le_u32 vcc, 12, v4")
    a(f"s_mul_i32 s{sT}, s{sCb}, 240\ns_add_u32 s{sSrcW}, s{sSrcW}, s{sT}")
    a(f"v_cndmask_b32 v4, v5, v6, vcc\ns_branch {L('srcdone')}")
    a.label(L("vsrc"))
    a(f"s_lshl_b32 s{sT}, s{sCb}, 8\ns_add_u32 s{sSrcW}, s{sSrcW}, s{sT}\ns_sub_u32 s{sSrcW}, s{sSrcW}, {11*256-2560}")
    a.label(L("srcdone"))
    a(f"v_mul_u32_u24 v3, 3840, v3\nv_lshl_add_u32 v{vDW(0)}, v4, 4, v3")
    for k in range(1, 4):
        a(f"v_add_u32 v{vDW(k)}, {k*(4*3840-1024)}, v{vDW(0)}")
    a(f"s_lshl_b32 s{sM0}, s{sW}, 12")
    if rot:
        a("s_bfe_u32 s54, s2, 0x20003\ns_mul_i32 s54, s54, 5\ns_add_u32 s54, s54, 1\ns_lshr_b32 s54, s54, 1\ns_lshr_b32 s55, s2, 5\ns_add_u32 s54, s54, s55")
        a("s_cmp_ge_u32 s54, 10\ns_cselect_b32 s55, 10, 0\ns_sub_u32 s54, s54, s55")
        a(f"s_lshl_b32 s55, s54, 7\ns_add_u32 s{sSrcX}, s{sSrcX}, s55\ns_mul_i32 s55, s54, {64*3840}\ns_add_u32 s{sSrcW}, s{sSrcW}, s55")
    a("s_waitcnt lgkmcnt(0)")
    srd(a, sX, 4, S * D * 2)
    srd(a, sWq, 6, D * 3 * D * 2)
    issued = 0
    def issue():
        nonlocal issued
        a(f"s_add_u32 s{sT}, s{sM0}, {(issued % NS) * SLOT}\ns_mov_b32 m0, s{sT}\ns_add_u32 s{sT}, s{sT}, 16384")
        for k in range(4):
            a(f"buffer_load_dwordx4 v{vDX(k)}, s[{sX}:{sX+3}], s{sSrcX} offen offset:{k*1024} lds")
        a(f"s_mov_b32 m0, s{sT}\ns_add_u32 s{sSrcX}, s{sSrcX}, 128")
        for k in range(4):
            a(f"buffer_load_dwordx4 v{vDW(k)}, s[{sWq}:{sWq+3}], s{sSrcW} offen offset:{k*1024} lds")
        a(f"s_add_u32 s{sSrcW}, s{sSrcW}, {64*3840}")
        if rot:
            a(f"s_add_u32 s54, s54, 1\ns_cmp_eq_u32 s54, 10\ns_cselect_b32 s55, 1280, 0\ns_cselect_b32 s53, {640*3840}, 0\ns_sub_u32 s{sSrcX}, s{sSrcX}, s55\ns_sub_u32 s{sSrcW}, s{sSrcW}, s53")
        issued += 1
    extras = []
    for b in range(10):
        while issued < min(10, b + first if b == 0 else b - 1 + NS):
            issue()
        if b == side_at:
            srd(a, 40, 44, D * D * 2)
            a(f"s_lshl_b32 s46, s2, 2\ns_add_u32 s46, s46, s{sW}\ns_mul_i32 s47, s46, 1280\nv_cmp_gt_u32 vcc, 40, v0\nv_lshlrev_b32 v1, 5, v0\nv_mov_b32 v2, {OOB}")
            a(f"v_cndmask_b32 v1, v2, v1, vcc")
            a(f"buffer_load_dwordx4 v[32:35], v1, s[40:43], s47 offen\nbuffer_load_dwordx4 v[36:39], v1, s[40:43], s47 offen offset:16")
            extra = [2, issued]
            extras.append(extra)
        if b == 0 and job: image_job_setup(a, L, sW)
        if b == job_at and job:
            image_job_load(a)
            extras.append([5, issued])
        n = 8 * (issued - 1 - b) + sum(e[0] for e in extras if e[1] - 1 >= b + (0 if e[1] == 10 else 1))
        a(f"s_waitcnt vmcnt({n})\ns_barrier")
    srd(a, sWS, 36, WS_END)
    if code_pf:
        a(f"s_getpc_b64 s[72:73]\n{L('pc')}:\ns_add_u32 s72, s72, {code_pf} - {L('pc')}\ns_addc_u32 s73, s73, 0")
        a(f"s_lshr_b32 s74, s2, 3\ns_min_u32 s74, s74, ({code_pf}_codeend - {code_pf}) / 1024 - 1\ns_lshl_b32 s74, s74, 10\ns_add_u32 s72, s72, s74\ns_addc_u32 s73, s73, 0")
        a("v_lshlrev_b32 v90, 4, v0\nv_mov_b32 v91, s73\nv_add_co_u32 v90, vcc, s72, v90\ns_nop 1\nv_addc_co_u32 v91, vcc, 0, v91, vcc")
        a("global_load_dwordx4 v[92:95], v[90:91], off")
    if job: image_job_store(a, sW, sWS, NS * SLOT, job_flags)
    a(f"v_mov_b32 v2, 0\nv_lshlrev_b32 v3, 2, v0\ns_lshl_b32 s47, s{sW}, 15\ns_lshl_b32 s48, s2, 7\ns_add_u32 s47, s47, s48\ns_add_u32 s47, s47, {WS_FLG}")
    a("s_mov_b64 exec, 0xffffffff")
    a(f"buffer_store_dword v2, v3, s[{sWS}:{sWS+3}], s47 offen\ns_mov_b64 exec, -1")
    for r in range(8):
        a(f"v_lshlrev_b32 v{40+2*r}, 16, v{32+r}\nv_and_b32 v{41+2*r}, 0xffff0000, v{32+r}")
    for w_ in (8, 4, 2, 1):
        for r in range(w_): a(f"v_add_f32 v{40+r}, v{40+r}, v{40+w_+r}")
    a("s_nop 1")
    for sh in (1, 2, 4, 8):
        a(f"v_add_f32_dpp v40, v40, v40 row_shr:{sh} row_mask:0xf bank_mask:0xf bound_ctrl:1\ns_nop 1")
    a("v_readlane_b32 s48, v40, 15\nv_readlane_b32 s49, v40, 31\nv_readlane_b32 s50, v40, 47\ns_nop 1")
    a(f"v_mov_b32 v40, s48\nv_add_f32 v40, s49, v40\nv_add_f32 v40, s50, v40\nv_mul_f32 v40, {f2u(1/640):#x}, v40")
    a("v_cvt_pk_bf16_f32 v41, v40, v40\nv_and_b32 v42, 0xffff0000, v41\nv_sub_f32 v42, v40, v42\nv_cvt_pk_bf16_f32 v42, v42, v42")
    a("s_mul_i32 s48, s46, 3277\ns_lshr_b32 s48, s48, 16\ns_mul_i32 s49, s48, 20\ns_sub_u32 s49, s46, s49\ns_lshr_b32 s50, s48, 4\ns_mul_i32 s50, s50, 1280\ns_and_b32 s51, s48, 1")
    a(f"s_cmp_ge_u32 s49, 16\ns_cbranch_scc1 {L('tblrem')}")
    a("s_bfe_u32 s52, s48, 0x30001\ns_add_u32 s52, s52, 2\ns_lshl_b32 s52, s52, 7\ns_lshl_b32 s51, s51, 6\ns_add_u32 s52, s52, s51")
    a(f"s_lshr_b32 s51, s49, 3\ns_lshl_b32 s51, s51, 5\ns_add_u32 s52, s52, s51\ns_and_b32 s51, s49, 7\ns_branch {L('tbldone')}")
    a.label(L("tblrem"))
    a("s_bfe_u32 s52, s48, 0x10003\ns_lshl_b32 s52, s52, 7\ns_bfe_u32 s53, s48, 0x20001\ns_lshl_b32 s53, s53, 5\ns_add_u32 s52, s52, s53")
    a("s_lshl_b32 s51, s51, 2\ns_add_u32 s51, s51, s49\ns_sub_u32 s51, s51, 16")
    a.label(L("tbldone"))
    a(f"s_lshl_b32 s51, s51, 1\ns_add_u32 s52, s52, s51\ns_add_u32 s52, s52, s50\ns_add_u32 s52, s52, {WS_TBL}")
    a(f"s_cmp_lt_u32 s46, 640\ns_cselect_b32 s52, s52, {OOB}\ns_mov_b64 exec, 1")
    a(f"buffer_store_short v41, v2, s[{sWS}:{sWS+3}], s52 offen\nbuffer_store_short v42, v2, s[{sWS}:{sWS+3}], s52 offen offset:16")
    a("s_mov_b64 exec, -1\ns_barrier\ns_barrier\ns_barrier\ns_endpgm")
    a.label(L("compute"))
    if pf == 1: sweep_in()
    a(f"s_lshr_b32 s{sMw}, s{sW}, 1\ns_and_b32 s{sNw}, s{sW}, 1")
    for i in range(2):
        a(f"s_xor_b32 s{sT}, s{sNw}, {i}\ns_lshl_b32 s{sTau[i]}, s{sMw}, 1\ns_add_u32 s{sTau[i]}, s{sTau[i]}, s{sT}")
        a(f"s_xor_b32 s{sT}, s{sMw}, {i}\ns_lshl_b32 s{sTj[i]}, s{sNw}, 1\ns_add_u32 s{sTj[i]}, s{sTj[i]}, s{sT}")
    a(f"v_and_b32 v2, 31, v0\nv_lshrrev_b32 v3, 5, v0")
    a(f"s_cmp_ge_u32 s{sCb}, 11\ns_cbranch_scc0 {L('norowperm')}")
    a(f"v_bfe_u32 v4, v0, 2, 1\nv_bfe_u32 v5, v0, 3, 1\nv_and_b32 v2, 0x13, v0\nv_lshl_or_b32 v2, v4, 3, v2\nv_lshl_or_b32 v2, v5, 2, v2")
    a.label(L("norowperm"))
    a(f"v_bfe_u32 v4, v2, 1, 3\nv_xor_b32 v4, v4, v3\nv_lshlrev_b32 v5, 7, v2")
    for s in range(4):
        a(f"v_xor_b32 v6, {2*s}, v4\nv_lshl_add_u32 v6, v6, 4, v5")
        for i in range(2):
            a(f"s_lshl_b32 s{sT}, s{sTau[i]}, 12\nv_add_u32 v{vXA(i,s)}, s{sT}, v6")
    a(f"v_bfe_u32 v4, v0, 2, 2\nv_lshl_add_u32 v5, v3, 3, v4\nv_lshlrev_b32 v5, 8, v5\nv_add_u32 v5, 16384, v5")
    a(f"v_bfe_u32 v6, v0, 4, 1\nv_lshlrev_b32 v6, 1, v6\nv_lshl_add_u32 v6, v4, 2, v6")
    a(f"v_and_b32 v26, 1, v0\nv_bfe_u32 v27, v0, 1, 1")
    for j in range(2):
        a(f"s_cmp_lt_u32 s{sTj[j]}, 3\ns_cselect_b32 s{sT}, 1, 0\ns_cmp_lt_u32 s{sCb}, 11\ns_cselect_b32 s{sT}, s{sT}, 0")
        a(f"s_cmp_eq_u32 s{sT}, 1\ns_cselect_b64 vcc, -1, 0\ns_lshl_b32 s{sT}, s{sTj[j]}, 2")
        a(f"v_cndmask_b32 v28, v27, v26, vcc\nv_cndmask_b32 v29, v26, v27, vcc")
        a(f"v_add3_u32 v28, v28, v6, s{sT}\nv_and_b32 v28, 15, v28\nv_lshl_add_u32 v28, v28, 4, v5\nv_lshl_add_u32 v{vWA(j)}, v29, 3, v28")
    for r in range(64): a(f"v_mov_b32 v{ACC+r}, 0")
    for r in range(12): a(f"v_mov_b32 v{XS+r}, 0")
    a(f"v_mov_b32 v{ONE}, 0x3f803f80\nv_mov_b32 v{ONE+1}, 0x3f803f80")
    for i in range(2):
        a(f"s_lshl_b32 s{sT}, s{sRb}, 2\ns_add_u32 s{sTau[i]}, s{sTau[i]}, s{sT}")
    a(f"s_mov_b32 s{sC}, 0\ns_mov_b32 s{sRd}, 0\ns_mov_b32 s38, {-(NS-1)*SLOT & 0xffffffff}")
    a("s_waitcnt lgkmcnt(0)")
    srd(a, sWS, 36, WS_END)
    a(f"s_cmp_ge_u32 s{sCb}, 11\ns_cbranch_scc1 {L('noparam')}")
    params()
    a.label(L("noparam"))
    if pf == 2: sweep_in()
    a("s_barrier")
    if pf == 3: sweep_in()
    stamp_at(a, stamp, 0)
    for r in reads(0, 0): a(r)
    a(f"s_cmp_ge_u32 s{sCb}, 11\ns_cbranch_scc1 {L('loopV')}")

    def small(d, x, y):
      if 'nosmall' not in abl and not ('noxs' in abl and d == XS): a(f"v_mfma_f32_4x4x4bf16_1k {vr(d,4)}, {vr(x,2)}, {vr(y,2)}, {vr(d,4)}")
    def loop(tag):
        a(".p2align 3")
        a.label(L("loop" + tag))
        for s in range(4):
            p = s % 2
            def big(j, i):
                x, w = vr(FX(p, i), 4), vr(FW(p, j), 4)
                if tag == "V": w, x = x, w
                a(f"v_mfma_f32_32x32x16_bf16 {vr(acc(j,i),16)}, {w}, {x}, {vr(acc(j,i),16)}")
            a("s_waitcnt lgkmcnt(0)")
            if s == 3:
                a("s_barrier")
            big(0, 0)
            if s == 3:
                a(f"s_add_u32 s{sRd}, s{sRd}, {SLOT}\ns_cmp_eq_u32 s{sRd}, {NS*SLOT}\ns_cselect_b32 s{sDelta}, s38, {SLOT}\ns_cselect_b32 s{sRd}, 0, s{sRd}")
                for r in [vXA(0,0), vXA(1,0), vWA(0), vWA(1)]:
                    a(f"v_add_u32 v{r}, s{sDelta}, v{r}")
            rd = reads(1 - p, (s + 1) % 4)
            if 'nods' in abl: rd = []
            for r in rd[:3]: a(r)
            small(XS, ONE, FX(p,0)); small(XQ, FX(p,0), FX(p,0)); small(WC, ONE, FW(p,0))
            big(0, 1)
            for r in rd[3:]: a(r)
            small(XS, ONE, FX(p,0)+2); small(XQ, FX(p,0)+2, FX(p,0)+2); small(WC, ONE, FW(p,0)+2)
            big(1, 0)
            if s == 3:
                for i in range(2):
                    for s2 in range(1, 4):
                        a(f"v_add_u32 v{vXA(i,s2)}, s{sDelta}, v{vXA(i,s2)}")
            big(1, 1)
        a(f"s_add_u32 s{sC}, s{sC}, 1\ns_cmp_lt_u32 s{sC}, 10\ns_cbranch_scc1 {L('loop'+tag)}")

    STAT = 0
    def stats():
        stamp_at(a, stamp, 1)
        a("s_waitcnt vmcnt(0) lgkmcnt(0)\ns_barrier")
        a(f"v_and_b32 v4, 3, v0\nv_cmp_eq_u32 vcc, 1, v4\nv_cmp_eq_u32 s[40:41], 2, v4\nv_cmp_eq_u32 s[42:43], 3, v4")
        a(f"s_and_b32 s{sT}, s{sTau[0]}, 3\ns_lshl_b32 s{sT}, s{sT}, 7\nv_lshl_add_u32 v6, v2, 2, s{sT}")
        a(f"v_cndmask_b32 v{XQ}, v{XQ}, v{XQ+1}, vcc\nv_cndmask_b32 v{XQ}, v{XQ}, v{XQ+2}, s[40:41]\nv_cndmask_b32 v{XQ}, v{XQ}, v{XQ+3}, s[42:43]")
        a(f"s_lshl_b32 s{sT}, s{sTj[0]}, 7\nv_and_b32 v7, 31, v0\nv_lshl_add_u32 v7, v7, 2, s{sT}")
        a(f"v_mov_b32 v{XQ+1}, v{XQ}\ns_nop 0")
        a(f"v_permlane32_swap_b32 v{XS}, v{XS+1}\nv_permlane32_swap_b32 v{WC}, v{WC+1}\nv_permlane32_swap_b32 v{XQ}, v{XQ+1}")
        a(f"v_add_f32 v{XS}, v{XS}, v{XS+1}\nv_add_f32 v{WC}, v{WC}, v{WC+1}\nv_add_f32 v{XQ}, v{XQ}, v{XQ+1}")
        a(f"v_mul_f32 v{XS}, {f2u(1/640):#x}, v{XS}\nv_mul_f32 v{XQ}, {f2u(1/640):#x}, v{XQ}")
        a(f"v_fma_f32 v{XQ}, -v{XS}, v{XS}, v{XQ}\nv_max_f32 v{XQ}, 0, v{XQ}\nv_add_f32 v{XQ}, {f2u(1e-5):#x}, v{XQ}\nv_rsq_f32 v{XQ}, v{XQ}")
        a(f"ds_write_b32 v7, v{WC} offset:{STAT+1024}")
        a(f"s_lshl_b32 s39, s{sRb}, 9\ns_add_u32 s39, s39, {WS_MUX}\ns_cmp_eq_u32 s{sCb}, 0\ns_cselect_b32 s39, s39, {OOB}")
        a(f"buffer_store_dword v{XS}, v6, s[{sWS}:{sWS+3}], s39 offen")
        a(f"v_mul_f32 v{XS}, v{XS}, v{XQ}")
        a(f"ds_write_b32 v6, v{XQ} offset:{STAT}\nds_write_b32 v6, v{XS} offset:{STAT+512}")
        a("s_waitcnt lgkmcnt(0)\ns_barrier")
        stamp_at(a, stamp, 2)

    loop("Q")
    stats()
    CS = 144
    RS, MR = (26, 28), (27, 29)
    for i in range(2):
        a(f"s_and_b32 s{sT}, s{sTau[i]}, 3\ns_lshl_b32 s{sT}, s{sT}, 7\nv_lshl_add_u32 v6, v2, 2, s{sT}")
        a(f"ds_read_b32 v{RS[i]}, v6 offset:{STAT}\nds_read_b32 v{MR[i]}, v6 offset:{STAT+512}")
    for j in range(2):
        a(f"s_lshl_b32 s{sT}, s{sTj[j]}, 7\nv_lshl_add_u32 v7, v3, 4, s{sT}")
        for g in range(4):
            a(f"ds_read_b128 {vr(CS+16*j+4*g,4)}, v7 offset:{STAT+1024+32*g}")
    a(f"v_lshlrev_b32 v4, 4, v0\nv_lshlrev_b32 v5, 3, v2")
    a("s_waitcnt lgkmcnt(0)")
    for j in range(2):
        a(f"s_cmp_eq_u32 s{sTj[j]}, 1\ns_cselect_b32 s64, s45, s44\ns_cselect_b32 s68, s49, s48\ns_cselect_b32 s69, s54, s52\ns_cselect_b32 s70, s55, s53")
        a(f"s_cmp_eq_u32 s{sTj[j]}, 2\ns_cselect_b32 s64, s46, s64\ns_cselect_b32 s68, s50, s68\ns_cselect_b32 s69, s56, s69\ns_cselect_b32 s70, s57, s70")
        a(f"s_cmp_eq_u32 s{sTj[j]}, 3\ns_cselect_b32 s65, s45, s64\ns_cselect_b32 s66, s46, s64")
        for i in range(2):
            A_ = acc(j, i)
            a(f"v_mul_f32 v30, s64, v{RS[i]}\nv_mul_f32 v31, s64, v{MR[i]}")
            for g in range(4):
                if g in (1, 2):
                    a(f"v_mul_f32 v30, s{64+g}, v{RS[i]}\nv_mul_f32 v31, s{64+g}, v{MR[i]}")
                for r in (0, 2):
                    q = A_ + 4 * g + r
                    a(f"v_pk_mul_f32 {vr(q,2)}, {vr(q,2)}, v[30:31] op_sel_hi:[1,0]")
                    a(f"v_pk_fma_f32 {vr(q,2)}, {vr(CS+16*j+4*g+r,2)}, v[30:31], {vr(q,2)} op_sel:[0,1,0] op_sel_hi:[1,1,1] neg_lo:[0,1,0] neg_hi:[0,1,0]")
            for r in range(8):
                a(f"v_cvt_pk_bf16_f32 v{A_+r}, v{A_+2*r}, v{A_+2*r+1}")
        a(f"s_cbranch_scc1 {L(f'rem{j}')}")
        for i in range(2):
            A_ = acc(j, i)
            a(f"buffer_store_dwordx4 {vr(A_,4)}, v4, s[{sWS}:{sWS+3}], s{69+i} offen {st_flags}")
            a(f"s_add_u32 s{69+i}, s{69+i}, s68")
            a(f"buffer_store_dwordx4 {vr(A_+4,4)}, v4, s[{sWS}:{sWS+3}], s{69+i} offen {st_flags}")
        a(f"s_branch {L(f'std{j}')}")
        a.label(L(f"rem{j}"))
        for g in range(3):
            a(f"v_mad_u32_u24 v6, v3, s{48+g}, v5")
            for i in range(2):
                a(f"buffer_store_dwordx2 {vr(acc(j,i)+2*g,2)}, v6, s[{sWS}:{sWS+3}], s{58+2*g+i} offen {st_flags}")
        a.label(L(f"std{j}"))
    a(f"s_branch {L('done')}")

    loop("V")
    stats()
    RSV, MRV, CSV = 144, 176, (26, 28)
    for i in range(2):
        a(f"s_and_b32 s{sT}, s{sTau[i]}, 3\ns_lshl_b32 s{sT}, s{sT}, 7\nv_lshl_add_u32 v6, v3, 5, s{sT}")
        for q in range(4):
            off = (q // 2) * 64 + (q % 2) * 16
            a(f"ds_read_b128 {vr(RSV+16*i+4*q,4)}, v6 offset:{STAT+off}\nds_read_b128 {vr(MRV+16*i+4*q,4)}, v6 offset:{STAT+512+off}")
        if i == 0: a("s_waitcnt lgkmcnt(4)")
    a(f"v_and_b32 v2, 31, v0\ns_mov_b32 s40, 3277\ns_mov_b32 s41, {KV_HEAD - 640}")
    for j in range(2):
        a(f"s_lshl_b32 s{sT}, s{sTj[j]}, 7\nv_lshl_add_u32 v7, v2, 2, s{sT}\nds_read_b32 v{CSV[j]}, v7 offset:{STAT+1024}")
        a(f"s_lshl_b32 s39, s{sCb}, 2\ns_add_u32 s39, s39, s{sTj[j]}\ns_sub_u32 s39, s39, 44\ns_lshl_b32 s39, s39, 5")
        a(f"v_add_u32 v4, s39, v2\nv_mul_u32_u24 v5, s40, v4\nv_lshrrev_b32 v5, 16, v5")
        a(f"v_mul_u32_u24 v6, 20, v5\nv_sub_u32 v6, v4, v6\nv_bfe_u32 v6, v6, 3, 1\nv_xor_b32 v6, v6, v3")
        a(f"v_lshlrev_b32 v4, 5, v4\nv_lshl_add_u32 v4, v6, 4, v4\nv_mad_u32_u24 v{30+j}, v5, s41, v4")
    for i in range(2):
        a(f"s_lshr_b32 s39, s{sTau[i]}, 3\ns_mul_i32 s39, s39, {KV_CHUNK}\ns_and_b32 s42, s{sTau[i]}, 7\ns_mul_i32 s42, s42, 1280")
        a(f"s_add_u32 s39, s39, s42\ns_add_u32 s{44+i}, s39, {WS_KV + KV_V}")
    a("s_waitcnt lgkmcnt(0)")
    for j in range(2):
        for i in range(2):
            A_ = acc(j, i)
            for r in range(0, 16, 2):
                a(f"v_pk_mul_f32 {vr(A_+r,2)}, {vr(A_+r,2)}, {vr(RSV+16*i+r,2)}")
                a(f"v_pk_fma_f32 {vr(A_+r,2)}, {vr(MRV+16*i+r,2)}, {vr(CSV[j],2)}, {vr(A_+r,2)} op_sel_hi:[1,0,1] neg_lo:[1,0,0] neg_hi:[1,0,0]")
            for r in range(8):
                a(f"v_cvt_pk_bf16_f32 v{A_+r}, v{A_+2*r}, v{A_+2*r+1}")
            a(f"buffer_store_dwordx4 {vr(A_,4)}, v{30+j}, s[{sWS}:{sWS+3}], s{44+i} offen {st_flags}")
            a(f"buffer_store_dwordx4 {vr(A_+4,4)}, v{30+j}, s[{sWS}:{sWS+3}], s{44+i} offen offset:640 {st_flags}")
    a.label(L("done"))
    stamp_end(a, stamp, L("exit"), stamp_wg)
    a.label(L("exit"))
    a("s_endpgm")
    return dict(name=name, grid=256, block=512, lds=NS * SLOT + 20480, nvgpr=208, nstamp=4)
```
